```python
import torch

def _softmax(x, axis=-1):
    return torch.softmax(x, dim=axis)
def _gelu(x):
    return torch.nn.functional.gelu(x, approximate="tanh")
def _silu(x):
    return torch.nn.functional.silu(x)
def _sigmoid(x):
    return torch.sigmoid(x)
def _layernorm(x, axis=-1, eps=1e-5):
    m = x.mean(dim=axis, keepdim=True)
    v = x.var(dim=axis, keepdim=True, unbiased=False)
    return (x - m) / torch.sqrt(v + eps)
def _scatter_add(tgt, idx, src, axis=0):
    return tgt.clone().index_add_(axis, idx, src)
def _segment_sum(src, seg, n):
    out = torch.zeros((n,) + src.shape[1:], dtype=src.dtype)
    return out.index_add_(0, seg, src)
def _pad(x, pw):
    flat = tuple(v for pair in reversed(pw) for v in pair)
    return torch.nn.functional.pad(x, flat)

kernel_name = 'sequential_preLN__linear_kernel_hedgehog__glu_gated_bilinear__prompt'

def setup_inputs():

    _w = (lambda a: (lambda t: t.to(torch.bfloat16) if t.is_floating_point() else t)(torch.as_tensor(a)))
    def _A_setup():
        B, S, D, H = 1, 2048, 576, 32
        Dh = D // H
        return {
            "x": _w((lambda *s: torch.randn(*s, dtype=torch.bfloat16) * 0.05)(B, S, D)),
            "wqkv": _w((lambda *s: torch.randn(*s, dtype=torch.bfloat16) * 0.2)(D, 3 * D)),
            "w_phi": _w((lambda *s: torch.randn(*s, dtype=torch.bfloat16) * 0.2)(H, Dh, Dh) * (Dh ** -0.5)),
            "wo": _w((lambda *s: torch.randn(*s, dtype=torch.bfloat16) * 0.05)(D, D)),
        }
    _A_in = _A_setup()

    def _B_setup():
        B, S, D, F = 1, 2048, 576, 4608
        return {
            "x": _w((lambda *s: torch.randn(*s, dtype=torch.bfloat16) * 0.05)(B, S, D)),
            "w_gate": _w((lambda *s: torch.randn(*s, dtype=torch.bfloat16) * 0.4)(D, F) * (D ** -0.5)),
            "w_up": _w((lambda *s: torch.randn(*s, dtype=torch.bfloat16) * 0.4)(D, F) * (D ** -0.5)),
            "w_down": _w((lambda *s: torch.randn(*s, dtype=torch.bfloat16) * 0.4)(F, D) * (F ** -0.5)),
        }
    _B_in = _B_setup()

    return {
        "A_x": _A_in["x"],
        "A_wqkv": _A_in["wqkv"],
        "A_w_phi": _A_in["w_phi"],
        "A_wo": _A_in["wo"],
        "B_x": _B_in["x"],
        "B_w_gate": _B_in["w_gate"],
        "B_w_up": _B_in["w_up"],
        "B_w_down": _B_in["w_down"],
    }

def reference(A_x, A_wqkv, A_w_phi, A_wo, B_x, B_w_gate, B_w_up, B_w_down):
    def _A_ref(x, wqkv, w_phi, wo):
        B, S, D = x.shape
        H = 32; Dh = D // H
        qkv = (lambda x, *d: x.permute(*d))((x @ wqkv).reshape(B, S, 3, H, Dh), 2, 0, 3, 1, 4)
        q, k, v = qkv[0], qkv[1], qkv[2]
        pq = torch.einsum("bhsd,hdf->bhsf", q, w_phi)
        pk = torch.einsum("bhsd,hdf->bhsf", k, w_phi)
        phi_q = torch.concatenate([_softmax(pq, axis=-1), _softmax(-pq, axis=-1)], axis=-1)
        phi_k = torch.concatenate([_softmax(pk, axis=-1), _softmax(-pk, axis=-1)], axis=-1)
        kv = torch.einsum("bhsf,bhsd->bhfd", phi_k, v)
        z  = torch.einsum("bhsf->bhf", phi_k)
        num = torch.einsum("bhqf,bhfd->bhqd", phi_q, kv)
        den = torch.einsum("bhqf,bhf->bhq", phi_q, z)[..., None] + 1e-6
        o = num / den
        return (lambda x, *d: x.permute(*d))(o, 0, 2, 1, 3).reshape(B, S, D) @ wo

    def _B_ref(x, w_gate, w_up, w_down):
        g = torch.einsum("bsd,df->bsf", x, w_gate)
        u = torch.einsum("bsd,df->bsf", x, w_up)
        h = g * u
        return torch.einsum("bsf,fd->bsd", h, w_down)

    x = A_x
    h = x + _A_ref(_layernorm(x, axis=-1), A_wqkv, A_w_phi, A_wo)
    h2 = h + _B_ref(_layernorm(h, axis=-1), B_w_gate, B_w_up, B_w_down)
    return h2
```

```python
import re
class Asm:
    def __init__(self):
        self.lines = []
        self.vm = []
        self.vm_done = 0
        self.lg = []
        self.lg_done = 0
    def __call__(self, s=""):
        for l in s.split("\n"):
            if l.strip(): self.lines.append(l.strip())
    def label(self, n):
        self.lines.append(n + ":")
    def text(self):
        return "\n".join(self.lines) + "\n"
    def vmop(self, s, tag=None):
        self(s); self.vm.append(tag)
        assert len(self.vm) - self.vm_done <= 63, "too many VMEM ops outstanding"
    def lgop(self, s, tag=None):
        if len(self.lg) - self.lg_done >= 15:
            self("s_waitcnt lgkmcnt(13)"); self.lg_done = len(self.lg) - 13
        self(s); self.lg.append(tag)
    def _need(self, lst, tags):
        idx = -1
        for t in tags:
            js = [j for j, x in enumerate(lst) if x == t]
            assert js, f"tag {t} never issued"
            idx = max(idx, js[-1])
        return idx + 1
    def wait(self, vm=(), lg=()):
        parts = []
        if vm == "all": n = len(self.vm)
        else: n = self._need(self.vm, vm) if vm else 0
        if n > self.vm_done:
            parts.append(f"vmcnt({len(self.vm) - n})"); self.vm_done = n
        if lg == "all": n = len(self.lg)
        else: n = self._need(self.lg, lg) if lg else 0
        if n > self.lg_done:
            c = len(self.lg) - n
            if c > 15: c = 15; n = len(self.lg) - 15
            parts.append(f"lgkmcnt({c})"); self.lg_done = n
        if parts: self("s_waitcnt " + " ".join(parts))
        return bool(parts)
    def reset_counters(self):
        self.vm = []; self.vm_done = 0; self.lg = []; self.lg_done = 0

def kernel_head(name):
    return f""".globl {name}
.p2align 8
.type {name},@function
{name}:"""

def kernel_desc(name, vgpr, sgpr=102, accum=None):
    if accum is None:
        accum = min(256, (vgpr + 3) // 4 * 4)
    return f""".amdhsa_kernel {name}
  .amdhsa_next_free_vgpr {vgpr}
  .amdhsa_next_free_sgpr {sgpr}
  .amdhsa_accum_offset {accum}
  .amdhsa_group_segment_fixed_size 0
  .amdhsa_kernarg_size 88
  .amdhsa_user_sgpr_count 2
  .amdhsa_user_sgpr_kernarg_segment_ptr 1
  .amdhsa_system_sgpr_workgroup_id_x 1
  .amdhsa_float_denorm_mode_32 3
.end_amdhsa_kernel"""

def srd(a, d, base, nbytes):
    a(f"s_mov_b32 s{d}, s{base}")
    a(f"s_and_b32 s{d+1}, s{base+1}, 0xffff")
    a(f"s_mov_b32 s{d+2}, {nbytes}")
    a(f"s_mov_b32 s{d+3}, 0x20000")

def vr(b, n=1, k="v"):
    return f"{k}{b}" if n == 1 else f"{k}[{b}:{b+n-1}]"

_REG = re.compile(r"^(-|abs\(|\|)*([vas])(?:(\d+)|\[(\d+):(\d+)\])[\)\|]*$")
def regs_of(op):
    op = op.strip()
    if op in ("vcc", "vcc_lo", "vcc_hi"): return {("s", "vcc")}
    if op == "exec": return {("s", "exec")}
    if op == "m0": return {("s", "m0")}
    m = _REG.match(op)
    if not m: return set()
    k = m.group(2)
    if m.group(3) is not None: return {(k, int(m.group(3)))}
    return {(k, i) for i in range(int(m.group(4)), int(m.group(5)) + 1)}
TRANS = ("v_exp_f32", "v_log_f32", "v_rcp_f32", "v_rsq_f32", "v_sqrt_f32", "v_sin_f32", "v_cos_f32")
class Ins:
    def __init__(self, line):
        self.line = line
        body = line.split(";")[0].strip()
        self.is_ins = bool(body) and not body.endswith(":") and not body.startswith(".")
        self.mn = ""; self.w = set(); self.r = set(); self.kind = "other"; self.states = 1
        self.srcC = set(); self.srcAB = set(); self.data = set()
        if not self.is_ins: return
        parts = body.split(None, 1)
        mn = self.mn = parts[0]
        rest = parts[1] if len(parts) > 1 else ""
        ops = []
        for o in rest.split(","):
            o = o.strip()
            if o: ops.append(o.split()[0])
        R = [regs_of(o) for o in ops]
        U = lambda xs: set().union(*xs) if xs else set()
        self.dpp = ("row_" in rest or "quad_perm" in rest or "_dpp" in mn)
        if mn == "s_nop": self.states = int(ops[0], 0) + 1; self.kind = "salu"
        elif mn.startswith("v_mfma"):
            self.kind = "mfma"; self.w = R[0]; self.srcAB = R[1] | R[2]; self.srcC = R[3]; self.r = self.srcAB | self.srcC
            self.passes = 8 if "32x32" in mn else 4
        elif mn.startswith("v_"):
            self.kind = "valu"
            if mn.startswith("v_permlane") and "swap" in mn: self.w = R[0] | R[1]; self.r = R[0] | R[1]
            elif mn.startswith("v_cmp"): self.w = R[0]; self.r = U(R[1:])
            elif "_co_" in mn: self.w = R[0] | R[1]; self.r = U(R[2:])
            else:
                self.w = R[0]; self.r = U(R[1:])
                if mn.startswith(("v_fmac", "v_dot2c", "v_writelane", "v_pk_fmac")) or self.dpp: self.r |= R[0]
            if mn.startswith("v_cmpx"): self.w |= {("s", "exec")}
        elif mn.startswith(("buffer_", "global_")):
            self.kind = "vmem"
            lds = rest.rstrip().endswith("lds") or "_lds_" in mn
            self.ldsdma = lds
            if "wbl2" in mn or "inv" in mn: pass
            elif "load" in mn and not lds: self.w = R[0]; self.r = U(R[1:])
            elif "atomic" in mn and "sc0" in rest:
                self.w = R[0]; self.r = U(R)
            else:
                self.r = U(R)
                if "store" in mn and ("x3" in mn or "x4" in mn):
                    self.data = R[0] if mn.startswith("buffer") else R[1]
        elif mn.startswith("ds_"):
            self.kind = "ds"
            if "read" in mn or "permute" in mn or "swizzle" in mn or "rtn" in mn: self.w = R[0]; self.r = U(R[1:])
            else: self.r = U(R)
        elif mn.startswith("s_"):
            self.kind = "salu"
            if mn.startswith(("s_cmp", "s_waitcnt", "s_barrier", "s_cbranch", "s_branch", "s_setprio", "s_sleep", "s_endpgm", "s_bitcmp")): self.r = U(R)
            else:
                self.w = R[0] if R else set(); self.r = U(R[1:])
                if "saveexec" in mn: self.w |= {("s", "exec")}

def need_states(p, c):
    n = 0
    vw = {x for x in p.w if x[0] in "va"}; sw = {x for x in p.w if x[0] == "s"}
    if p.kind == "valu":
        if c.kind == "mfma" and vw & c.r: n = max(n, 2)
        if c.kind == "valu":
            if c.mn.startswith("v_permlane") and vw & c.r: n = max(n, 2)
            if c.dpp and vw & c.r: n = max(n, 2)
            if c.mn.startswith(("v_readlane", "v_readfirstlane")) and vw & c.r: n = max(n, 1)
            if p.mn.startswith(TRANS) and vw & c.r: n = max(n, 1)
            if sw & c.r: n = max(n, 4 if c.mn.startswith(("v_readlane", "v_writelane")) else 2)
            if ("s", "exec") in sw: n = max(n, 5 if c.dpp else 4 if c.mn.startswith(("v_readlane", "v_readfirstlane", "v_writelane", "v_permlane")) else 0)
            if p.mn.startswith("v_dot") and vw & (c.r | c.w) and not (c.mn == p.mn): n = max(n, 3)
            if "sdwa" in p.mn and vw & (c.r | c.w): n = max(n, 1)
        if c.kind == "vmem" and sw & c.r: n = max(n, 5)
        if c.kind == "salu" and sw & c.r: n = max(n, 1)
        if c.kind == "mfma" and ("s", "exec") in sw: n = max(n, 4)
    if p.kind == "mfma":
        big = p.passes == 8
        if c.kind == "mfma":
            if p.w & c.srcAB: n = max(n, 12 if big else 8)
            if p.w & c.srcC and not (p.w == c.srcC and p.passes == c.passes): n = max(n, 10 if big else 6)
            if p.w & c.w and not (p.w & c.srcC) : n = max(n, 10 if big else 6) if p.w != c.w else n
        elif c.kind in ("valu", "vmem", "ds"):
            if p.w & (c.r | c.w): n = max(n, 12 if big else 8)
            if c.kind == "valu" and p.srcC & c.w: n = max(n, 7 if big else 3)
    if p.kind == "salu" and ("s", "m0") in sw:
        if c.kind == "vmem" and getattr(c, "ldsdma", False): n = max(n, 1)
        if c.kind == "valu" and ("s", "m0") in c.r: n = max(n, 1)
    if p.kind == "vmem" and p.data and p.data & c.w: n = max(n, 2)
    return n

def fix_hazards(text, verbose=False):
    out = []; hist = []
    added = 0
    for line in text.split("\n"):
        c = Ins(line)
        if not c.is_ins:
            out.append(line); continue
        dist = 0; short = 0
        for p in reversed(hist):
            nd = need_states(p, c)
            if nd > dist: short = max(short, nd - dist)
            dist += p.states
            if dist >= 12: break
        if short:
            nop = Ins(f"s_nop {short-1}")
            out.append(nop.line); hist.append(nop); added += short
            if verbose: print("pad", short, "before", line)
        out.append(line); hist.append(c)
        if c.mn in ("s_endpgm", "s_branch"): hist = []
        hist = hist[-14:]
    return "\n".join(out), added
```

```python
from asmlib import *
from layout import *
from k3 import stamp, stamp0, stamp_out, assemble_file
L_K = 0; L_V = 46096; L_XR = 92192; L_Q = L_XR; L_PHI = L_XR + 49152; L_CS = L_PHI + 4608; L_Z = L_CS + 512; L_KVA = L_Z + 896; LDS_SIZE = L_KVA + 3328
L_STG = L_K
OOB = 0x40000000
def gen(name="attn_kernel", prof=0, kidx=0, npf=0, dbg=False):
    a = Asm()
    LANE = 1; TOK = 2; Q = 3; V_DW = 4; V_DX = 5; V_XB = 7; V_KB = 9; V_VB = 10; V_T4 = 11; V_CS = 12; V_QB = 13; V_Q2 = 14; V_CQ = 15
    V_RSTD = 16; V_NM = 17; V_A = 18; V_B = 19; V_C = 20; V_D = 21; V_AUX = 22
    ONES = 28; T = 32
    AF = 48
    ACC = 96
    XF = 128
    PA = 200
    PH = 224
    AX = 236
    VST = 250
    SUM = ACC + 20; GRAM = ACC + 24; CSA = ACC + 28
    S_X = 16; S_W = 20; S_DB = 24; S_WS = 28; S_AUX = 56; S_WO = 60
    E = name + "_end"
    def st(i):
        if prof: stamp(a, i, VST); a.lg_done = len(a.lg)
    a(kernel_head(name))
    if prof: stamp0(a)
    a(f"s_cmp_ge_u32 s2, 256\ns_cbranch_scc1 {E}")
    a("s_load_dwordx8 s[4:11], s[0:1], 0\ns_load_dwordx4 s[64:67], s[0:1], 72\ns_load_dwordx4 s[68:71], s[0:1], 40\ns_load_dwordx2 s[72:73], s[0:1], 56")
    a(f"v_lshrrev_b32 v{T}, 6, v0\nv_and_b32 v{LANE}, 63, v0\nv_readfirstlane_b32 s12, v{T}")
    a("s_and_b32 s32, s2, 3\ns_lshl_b32 s32, s32, 2\ns_bfe_u32 s33, s2, 0x20003\ns_add_u32 s13, s32, s33")
    a("s_bfe_u32 s32, s2, 0x10002\ns_lshl_b32 s32, s32, 3\ns_lshr_b32 s34, s2, 5\ns_add_u32 s14, s32, s34")
    a("s_lshl_b32 s33, s33, 1\ns_add_u32 s33, s33, s34\ns_cmp_ge_u32 s33, 9\ns_cselect_b32 s34, 9, 0\ns_sub_u32 s33, s33, s34")
    a("s_lshl_b32 s15, s14, 3\ns_add_u32 s15, s15, s12")
    a(f"v_mul_u32_u24 v{T}, 52, v{LANE}\nv_lshrrev_b32 v{T}, 8, v{T}\nv_mul_u32_u24 v{T+1}, 5, v{T}\nv_sub_u32 v{T+1}, v{LANE}, v{T+1}")
    a(f"v_and_b32 v{T+2}, 1, v{T}\nv_lshrrev_b32 v{T}, 1, v{T}\nv_lshl_add_u32 v{T}, v{T+2}, 2, v{T}\nv_mul_u32_u24 v{T}, 3456, v{T}\nv_lshl_add_u32 v{V_DW}, v{T+1}, 4, v{T}")
    a(f"v_lshrrev_b32 v{T}, 3, v{LANE}\nv_and_b32 v{T+1}, 7, v{LANE}\nv_lshrrev_b32 v{T+2}, 1, v{T}\nv_xor_b32 v{T+1}, v{T+1}, v{T+2}\nv_mul_u32_u24 v{T}, 1152, v{T}")
    a(f"v_lshl_add_u32 v{V_DX}, v{T+1}, 4, v{T}\nv_xor_b32 v{T+1}, 4, v{T+1}\nv_lshl_add_u32 v{V_DX+1}, v{T+1}, 4, v{T}\nv_add_u32 v{V_DX+1}, {8*1152-1024}, v{V_DX+1}")
    UW = 64 * 3456
    a(f"s_mul_i32 s41, s13, 72\ns_and_b32 s41, s41, 0xfffffff0\ns_mul_i32 s37, s12, {8*3456}\ns_add_u32 s41, s41, s37\ns_mul_i32 s37, s33, {UW}\ns_add_u32 s40, s41, s37\ns_add_u32 s41, s41, {9*UW}")
    a(f"s_mul_i32 s43, s15, {16*1152}\ns_lshl_b32 s37, s33, 7\ns_add_u32 s42, s43, s37\ns_add_u32 s43, s43, 1152")
    a(f"s_mul_i32 s35, s12, 640\ns_lshl_b32 s36, s12, 11\ns_add_u32 s36, s36, {L_XR}\ns_mov_b32 s44, -1\ns_mov_b32 s45, 0xff")
    a("s_waitcnt lgkmcnt(0)")
    srd(a, S_X, 4, 2048*1152); srd(a, S_W, 6, 576*3456)
    def wrap(s, step, lim, span):
        a(f"s_add_u32 s{s}, s{s}, {step}\ns_cmp_ge_u32 s{s}, s{lim}\ns_cselect_b32 s37, {span}, 0\ns_sub_u32 s{s}, s{s}, s37")
    def dma_kv(u):
        a(f"s_add_u32 m0, s36, {(u % 3)*16384}\ns_add_u32 s38, s40, 1152")
        a.vmop(f"buffer_load_dwordx4 v{V_DX}, s[{S_X}:{S_X+3}], s42 offen lds", ("x", u))
        a.vmop(f"buffer_load_dwordx4 v{V_DX+1}, s[{S_X}:{S_X+3}], s42 offen offset:1024 lds", ("x", u))
        a(f"s_add_u32 m0, s35, {L_K + u*5120}\ns_mov_b64 exec, s[44:45]")
        a.vmop(f"buffer_load_dwordx4 v{V_DW}, s[{S_W}:{S_W+3}], s38 offen lds", ("W", u))
        a(f"s_add_u32 m0, s35, {L_V + u*5120}\ns_add_u32 s38, s40, 2304")
        a.vmop(f"buffer_load_dwordx4 v{V_DW}, s[{S_W}:{S_W+3}], s38 offen lds", ("W", u))
        a("s_mov_b64 exec, -1")
        wrap(40, UW, 41, 9*UW); wrap(42, 128, 43, 1152)
    def dma_q(us):
        a("s_mov_b64 exec, s[44:45]")
        for u in us:
            a(f"s_add_u32 m0, s35, {L_Q + u*5120}\ns_nop 0")
            a.vmop(f"buffer_load_dwordx4 v{V_DW}, s[{S_W}:{S_W+3}], s40 offen lds", ("Q", u))
            wrap(40, UW, 41, 9*UW)
        a("s_mov_b64 exec, -1")
    dma_kv(0)
    srd(a, S_AUX, 8, 32*648)
    a(f"v_lshlrev_b32 v{T}, 2, v0\nv_cmp_gt_u32 vcc, 324, v0\nv_mov_b32 v{T+1}, {OOB}\nv_cndmask_b32 v{T}, v{T+1}, v{T}, vcc\ns_mul_i32 s38, s13, 1296")
    a.vmop(f"buffer_load_dword v{V_AUX}, v{T}, s[{S_AUX}:{S_AUX+3}], s38 offen", "phi")
    dma_kv(1); dma_kv(2)
    srd(a, S_DB, 64, 256); srd(a, S_WS, 66, WS_SIZE); srd(a, S_WO, 10, 576*1152)
    for i in range(4): a(f"v_mov_b32 v{T+4+i}, 0\nv_mov_b32 v{ONES+i}, 0x3f803f80")
    a(f"v_min_u32 v{T}, 375, v0\nv_lshlrev_b32 v{T}, 4, v{T}\nv_add_u32 v{T}, {L_PHI}, v{T}")
    a.lgop(f"ds_write_b128 v{T}, {vr(T+4,4)}", "z")
    a(f"v_and_b32 v{TOK}, 15, v{LANE}\nv_lshrrev_b32 v{Q}, 4, v{LANE}")
    a(f"v_lshrrev_b32 v{T}, 1, v{TOK}\nv_xor_b32 v{T}, v{T}, v{Q}\nv_lshlrev_b32 v{T}, 4, v{T}\nv_lshl_add_u32 v{T}, v{TOK}, 7, v{T}\nv_add_u32 v{V_XB}, s36, v{T}")
    a(f"v_xor_b32 v{T}, 64, v{T}\nv_add_u32 v{V_XB+1}, s36, v{T}")
    a(f"s_and_b32 s37, s13, 1\ns_lshl_b32 s37, s37, 3\nv_lshrrev_b32 v{T}, 2, v{LANE}\nv_mul_u32_u24 v{T}, 160, v{T}\nv_add_u32 v{T}, s37, v{T}\nv_and_b32 v{T+1}, 3, v{LANE}")
    a(f"v_lshl_add_u32 v{V_KB}, v{T+1}, 3, v{T}\nv_add_u32 v{V_VB}, {L_V}, v{V_KB}\nv_add_u32 v{V_QB}, {L_Q}, v{V_KB}\nv_add_u32 v{V_Q2}, {L_Q+64}, v{T}")
    a(f"v_cmp_eq_u32 vcc, 1, v{T+1}\nv_add_u32 v{T+2}, 64, v{T}\nv_add_u32 v{T+3}, {L_V+64}, v{T}\nv_cndmask_b32 v{V_T4}, v{T+2}, v{T+3}, vcc")
    a(f"s_and_b32 s37, s12, 1\ns_lshl_b32 s37, s37, 5\nv_add_u32 v{V_CQ}, s37, v{V_QB}\ns_bitcmp1_b32 s12, 1\ns_cselect_b32 s38, {L_V}, 0\ns_add_u32 s37, s37, s38\nv_add_u32 v{V_CS}, s37, v{V_KB}")
    a(f"s_cmp_ge_u32 s12, 4\ns_cselect_b64 vcc, -1, 0\nv_cndmask_b32 v{V_CS}, v{V_CS}, v{V_T4}, vcc\ns_cmp_ge_u32 s12, 2\ns_cselect_b64 vcc, -1, 0\nv_cndmask_b32 v{V_CQ}, v{V_CQ}, v{V_Q2}, vcc")
    a(f"v_mul_u32_u24 v{T}, 7282, v0\nv_lshrrev_b32 v{T}, 16, v{T}\nv_mul_u32_u24 v{T+1}, 9, v{T}\nv_sub_u32 v{T+1}, v0, v{T+1}\nv_lshlrev_b32 v{T+1}, 1, v{T+1}")
    a(f"v_cmp_le_u32 vcc, 18, v{T}\nv_mul_u32_u24 v{T+2}, 96, v{T}\nv_add_u32 v{T+2}, {L_PHI}, v{T+2}\nv_cndmask_b32 v{T+3}, 0, 16, vcc\nv_add_u32 v{T+2}, v{T+2}, v{T+3}")
    for e in range(2):
        a(f"v_add_u32 v{T+3}, {e}, v{T+1}\nv_cmp_le_u32 vcc, 9, v{T+3}\nv_subrev_u32 v{T+8}, 9, v{T+3}\nv_cndmask_b32 v{T+3}, v{T+3}, v{T+8}, vcc\nv_cndmask_b32 v{T+8}, 0, 8, vcc")
        a(f"v_lshrrev_b32 v{T+9}, 2, v{T+3}\nv_and_b32 v{T+3}, 3, v{T+3}\nv_lshl_add_u32 v{T+8}, v{T+9}, 5, v{T+8}\nv_lshl_add_u32 v{T+8}, v{T+3}, 1, v{T+8}\nv_add_u32 v{V_AUX+1+e}, v{T+2}, v{T+8}")
    def gemm(tiles, extras, hooks, xreads):
        n = len(tiles)
        def rds(s):
            out = []
            if xreads: out.append((f"ds_read_b128 {vr(XF+4*s,4)}, v{V_XB + s % 2} offset:{(s // 2 % 3)*16384}", ("xr", s)))
            for t, (b, imm, acc) in enumerate(tiles):
                f = AF + 24*(s % 2) + 4*t
                for j in range(2): out.append((f"ds_read_b64_tr_b16 {vr(f+2*j,2)}, v{b} offset:{s*2560 + 80*j + imm}", ("rd", id(tiles), s, t)))
            return out
        def mf(s):
            x = vr(XF+4*s, 4); out = []
            for acc, A in extras: out.append((f"v_mfma_f32_16x16x32_bf16 {vr(acc,4)}, {A or x}, {x}, {vr(acc,4) if s else 0}", [("xr", s)]))
            for t, (b, imm, acc) in enumerate(tiles):
                f = vr(AF + 24*(s % 2) + 4*t, 4)
                ops = (f, x) if t < n - 1 else (vr(ONES, 4), f)
                out.append((f"v_mfma_f32_16x16x32_bf16 {vr(acc,4)}, {ops[0]}, {ops[1]}, {vr(acc,4) if s else 0}", [("rd", id(tiles), s, t)]))
            return out
        for s in range(19):
            if s in hooks: hooks[s]()
            rq = rds(s) if s < 18 else []
            mq = mf(s - 1) if s else []
            while rq or mq:
                if mq:
                    m, need = mq.pop(0); a.wait(lg=need); a(m)
                for _ in range(2 if mq else 99):
                    if rq: x, tag = rq.pop(0); a.lgop(x, tag)
    hooks = {}
    def mk(u):
        def h0():
            a.wait(vm=[("W", u), ("x", u)] + (["phi"] if u == 0 else []), lg=(["z"] if u == 0 else ["sc"] if u == 1 else []) + ([("xr", 2*u - 1)] if u else []))
            a("s_barrier")
            if u == 0:
                st(1)
                a(f"v_cmp_gt_u32 vcc, 324, v0\ns_and_saveexec_b64 s[46:47], vcc")
                a.lgop(f"ds_write_b16 v{V_AUX+1}, v{V_AUX}", "sc"); a.lgop(f"ds_write_b16_d16_hi v{V_AUX+2}, v{V_AUX}", "sc")
                a("s_mov_b64 exec, -1")
            if 1 <= u <= 6: dma_kv(u + 2)
            if u == 7: dma_q([0, 1, 2])
            if u == 8: dma_q([3, 4, 5])
        return h0
    for u in range(9): hooks[2*u] = mk(u)
    kvt = [(V_KB, 0, ACC), (V_KB, 32, ACC+4), (V_VB, 0, ACC+8), (V_VB, 32, ACC+12), (V_T4, 0, ACC+16), (V_CS, 0, CSA)]
    gemm(kvt, [(SUM, vr(ONES, 4)), (GRAM, None)], hooks, True)
    st(2)
    a(f"v_lshrrev_b32 v{T}, 2, v{LANE}\nv_mul_u32_u24 v{T}, 96, v{T}\nv_and_b32 v{T+1}, 3, v{LANE}\nv_lshl_add_u32 v{T}, v{T+1}, 3, v{T}\nv_add_u32 v{T}, {L_PHI}, v{T}")
    for j in range(3):
        for jj in range(3): a.lgop(f"ds_read_b64_tr_b16 {vr(PA+8*j+2*jj,2)}, v{T} offset:{1536*jj + 32*j}", "pa")
        a(f"v_mov_b32 v{PA+8*j+6}, 0\nv_mov_b32 v{PA+8*j+7}, 0")
    def cs_publish(smax, base):
        a(f"s_min_u32 s37, s12, {smax}\ns_lshl_b32 s37, s37, 6\ns_add_u32 s37, s37, {L_CS + base}\nv_lshlrev_b32 v{T}, 2, v{TOK}\nv_add_u32 v{T}, s37, v{T}")
        a.lgop(f"ds_write_b32 v{T}, v{CSA}", "cs")
    cs_publish(4, 0)
    a(f"v_and_b32 v{T+1}, 3, v{TOK}\nv_cmp_eq_u32 vcc, 1, v{T+1}\nv_cndmask_b32 v{T+2}, v{GRAM}, v{GRAM+1}, vcc\nv_cmp_eq_u32 vcc, 2, v{T+1}\nv_cndmask_b32 v{T+2}, v{T+2}, v{GRAM+2}, vcc")
    a(f"v_cmp_eq_u32 vcc, 3, v{T+1}\nv_cndmask_b32 v{T+2}, v{T+2}, v{GRAM+3}, vcc\nv_lshrrev_b32 v{T+1}, 2, v{TOK}\nv_lshl_add_u32 v{T+1}, v{T+1}, 4, v{TOK}\nv_lshlrev_b32 v{T+1}, 2, v{T+1}")
    a.lgop(f"ds_bpermute_b32 v{T+3}, v{T+1}, v{T+2}", "bp")
    a(f"v_mul_f32 v{V_NM}, 0x3ae38e39, v{SUM}")
    a.wait(lg="all")
    a("s_barrier")
    CSR = AF
    a(f"v_lshlrev_b32 v{V_A}, 4, v{Q}\nv_add_u32 v{V_A}, {L_CS}, v{V_A}")
    for t in range(5): a.lgop(f"ds_read_b128 {vr(CSR+4*t,4)}, v{V_A} offset:{64*t}", ("csr", t))
    dma_q([6, 7, 8])
    a(f"v_lshlrev_b32 v{T}, 2, v{LANE}\nv_cmp_gt_u32 vcc, 16, v{LANE}\ns_cmp_eq_u32 s13, 0\ns_cselect_b64 s[46:47], -1, 0\ns_and_b64 vcc, vcc, s[46:47]\nv_mov_b32 v{T+1}, {OOB}\nv_cndmask_b32 v{T}, v{T+1}, v{T}, vcc")
    a(f"s_lshl_b32 s38, s15, 6\ns_add_u32 s38, s38, {WS_MEANX}")
    a.vmop(f"buffer_store_dword v{V_NM}, v{T}, s[{S_WS}:{S_WS+3}], s38 offen sc1", "mx")
    a(f"v_mul_f32 v{T+3}, 0x3ae38e39, v{T+3}\nv_fma_f32 v{T+3}, -v{V_NM}, v{V_NM}, v{T+3}\nv_max_f32 v{T+3}, 0, v{T+3}\nv_add_f32 v{T+3}, 0x3727c5ac, v{T+3}\nv_rsq_f32 v{V_RSTD}, v{T+3}")
    a(f"v_mul_f32 v{T+4}, v{V_NM}, v{V_RSTD}\nv_sub_f32 v{V_NM}, 0, v{T+4}")
    def correct(t, csr, dst, tag):
        a.wait(lg=[tag])
        for r in range(4): a(f"v_mul_f32 v{csr+r}, v{csr+r}, v{V_NM}")
        for r in range(4): a(f"v_fma_f32 v{csr+r}, v{ACC+4*t+r}, v{V_RSTD}, v{csr+r}")
        a(f"v_cvt_pk_bf16_f32 v{dst}, v{csr}, v{csr+1}\nv_cvt_pk_bf16_f32 v{dst+1}, v{csr+2}, v{csr+3}")
    KB = AF + 24; P = AF + 36
    VV = AF + 32
    def phi_mfma():
        for j in range(3): a(f"v_mfma_f32_16x16x32_bf16 {vr(P+4*j,4)}, {vr(PA+8*j,4)}, {vr(KB,4)}, 0")
        for j in range(3): a(f"v_mfma_f32_16x16x32_bf16 {vr(P+4*j,4)}, {vr(PA+8*j+4,4)}, {vr(KB+4,4)}, {vr(P+4*j,4)}")
    EE = AF
    def allred(op, x, t):
        a(f"v_mov_b32 v{t}, v{x}\nv_permlane16_swap_b32 v{t}, v{x}\n{op} v{x}, v{x}, v{t}")
    def softmax():
        a(f"v_max3_f32 v{T}, v{P}, v{P+1}, v{P+2}\nv_min3_f32 v{T+1}, v{P}, v{P+1}, v{P+2}")
        for i in (3, 5, 7): a(f"v_max3_f32 v{T}, v{T}, v{P+i}, v{P+i+1}\nv_min3_f32 v{T+1}, v{T+1}, v{P+i}, v{P+i+1}")
        a(f"v_mov_b32 v{T+2}, v{T}\nv_mov_b32 v{T+3}, v{T+1}\ns_mov_b32 s38, 0x3fb8aa3b\nv_permlane16_swap_b32 v{T+2}, v{T}\nv_permlane16_swap_b32 v{T+3}, v{T+1}")
        a(f"v_max_f32 v{T}, v{T}, v{T+2}\nv_min_f32 v{T+1}, v{T+1}, v{T+3}\nv_mul_f32 v{T}, s38, v{T}\nv_mul_f32 v{T+1}, s38, v{T+1}")
        for i in range(9): a(f"v_fma_f32 v{EE+i}, v{P+i}, s38, -v{T}\nv_fma_f32 v{EE+9+i}, -v{P+i}, s38, v{T+1}")
        for i in range(18): a(f"v_exp_f32 v{EE+i}, v{EE+i}")
        a(f"v_add_f32 v{T}, v{EE}, v{EE+1}\nv_add_f32 v{T+1}, v{EE+9}, v{EE+10}")
        for i in range(2, 9): a(f"v_add_f32 v{T}, v{T}, v{EE+i}\nv_add_f32 v{T+1}, v{T+1}, v{EE+9+i}")
        a(f"v_mov_b32 v{T+2}, v{T}\nv_mov_b32 v{T+3}, v{T+1}\nv_mov_b32 v{PH+9}, 0\nv_permlane16_swap_b32 v{T+2}, v{T}\nv_permlane16_swap_b32 v{T+3}, v{T+1}")
        a(f"v_add_f32 v{T}, v{T}, v{T+2}\nv_add_f32 v{T+1}, v{T+1}, v{T+3}\nv_rcp_f32 v{T}, v{T}\nv_rcp_f32 v{T+1}, v{T+1}")
        for i in range(18): a(f"v_mul_f32 v{EE+i}, v{EE+i}, v{T + i // 9}")
        for i in range(9): a(f"v_cvt_pk_bf16_f32 v{PH+i}, v{EE+2*i}, v{EE+2*i+1}")
    a(f"v_mov_b32 v{KB+6}, 0\nv_mov_b32 v{KB+7}, 0")
    correct(0, CSR, KB, ("csr", 0)); correct(1, CSR+4, KB+2, ("csr", 1)); correct(4, CSR+16, KB+4, ("csr", 4))
    phi_mfma()
    correct(2, CSR+8, VV, ("csr", 2)); correct(3, CSR+12, VV+2, ("csr", 3))
    a(f"s_mul_i32 s37, s12, {16*240}\nv_mul_u32_u24 v{V_A}, 240, v{TOK}\nv_add_u32 v{V_A}, s37, v{V_A}")
    a(f"v_lshl_add_u32 v{T}, v{Q}, 3, v{V_A}\nv_min_u32 v{T+1}, 1, v{Q}\nv_lshl_add_u32 v{T+1}, v{T+1}, 2, v{T}")
    a.lgop(f"ds_write_b64 v{T}, {vr(VV,2)} offset:{L_STG+160}", "stg")
    a.lgop(f"ds_write_b32 v{T+1}, v{VV+2} offset:{L_STG+160+32}", "stg")
    a.lgop(f"ds_write_b32 v{T}, v{VV+3} offset:{L_STG+160+40}", "stg")
    a(f"v_cmp_eq_u32 vcc, 1, v{Q}\nv_mov_b32 v{T+2}, 0x3f80\nv_cndmask_b32 v{T+3}, v{T+2}, v{KB+4}, vcc\nv_cndmask_b32 v{T+2}, v{T+2}, v{KB+5}, vcc")
    a(f"v_cndmask_b32 v{T+4}, 0, 32, vcc\nv_add_u32 v{T+4}, v{T+4}, v{V_A}\nv_cndmask_b32 v{T+5}, 4, 0, vcc\nv_add_u32 v{T+5}, v{T+5}, v{V_A}")
    a.lgop(f"ds_write_b32 v{T+4}, v{T+3} offset:{L_STG+160+36}", "stg")
    a.lgop(f"ds_write_b32 v{T+5}, v{T+2} offset:{L_STG+160+72}", "stg")
    softmax()
    a(f"v_mul_u32_u24 v{T}, 40, v{Q}\nv_add_u32 v{T}, v{T}, v{V_A}")
    for i in range(5): a.lgop(f"ds_write_b64 v{T}, {vr(PH+2*i,2)} offset:{L_STG+8*i}", "stg")
    a("s_cmp_ge_u32 s12, 3\ns_cselect_b32 s46, 1, 0\ns_mul_i32 s47, s46, 3\ns_sub_u32 s47, s12, s47\ns_min_u32 s47, s47, 2")
    a(f"v_lshrrev_b32 v{T}, 2, v{LANE}\nv_mul_u32_u24 v{T}, 480, v{T}\nv_and_b32 v{T+1}, 3, v{LANE}\nv_lshl_add_u32 v{T+1}, v{T+1}, 3, v{T}")
    a(f"s_mul_i32 s37, s46, 80\ns_lshl_b32 s38, s47, 5\ns_add_u32 s37, s37, s38\nv_add_u32 v{V_B}, s37, v{T+1}")
    a(f"s_mul_i32 s37, s46, 40\ns_add_u32 s37, s37, 160\nv_add_u32 v{V_C}, s37, v{T+1}\ns_add_u32 s37, s37, 32\nv_add_u32 v{V_D}, s37, v{T}")
    a.wait(lg="all")
    a("s_barrier")
    st(3)
    D0 = ACC; D1 = ACC + 4
    for s in range(4):
        for k, b in enumerate((V_B, V_C, V_D)):
            for j in range(2): a.lgop(f"ds_read_b64_tr_b16 {vr(AF+12*s+4*k+2*j,2)}, v{b} offset:{L_STG + s*7680 + 240*j}", ("kv", s, k))
    a(f"s_lshl_b32 s38, s47, 4\nv_add_u32 v{T}, s38, v{TOK}\nv_cmp_gt_u32 vcc, 40, v{T}\ns_cmp_lt_u32 s12, 6\ns_cselect_b64 s[48:49], -1, 0\ns_and_b64 vcc, vcc, s[48:49]")
    a(f"v_lshlrev_b32 v{T}, 4, v{T}\nv_mov_b32 v{T+2}, {OOB}\nv_cndmask_b32 v{T}, v{T+2}, v{T}, vcc\nv_mul_u32_u24 v{T+1}, 640, v{Q}\nv_add_u32 v{T+1}, v{T+1}, v{T}")
    a(f"v_cmp_eq_u32 vcc, 0, v{Q}\nv_cndmask_b32 v{T}, v{T+2}, v{T}, vcc")
    a(f"s_mul_i32 s50, s13, {16*6400}\ns_add_u32 s50, s50, {WS_KVP}\ns_mul_i32 s37, s14, 6400\ns_mul_i32 s38, s46, 3200\ns_add_u32 s37, s37, s38\ns_add_u32 s51, s50, s37")
    for s in range(4):
        f = AF + 12*s
        a.wait(lg=[("kv", s, 1)]); a(f"v_mfma_f32_16x16x32_bf16 {vr(D0,4)}, {vr(f+4,4)}, {vr(f,4)}, {vr(D0,4) if s else 0}")
        a.wait(lg=[("kv", s, 2)]); a(f"v_mfma_f32_16x16x32_bf16 {vr(D1,4)}, {vr(f+8,4)}, {vr(f,4)}, {vr(D1,4) if s else 0}")
    a.vmop(f"buffer_store_dwordx4 {vr(D0,4)}, v{T+1}, s[{S_WS}:{S_WS+3}], s51 offen sc1", "kvp")
    a.vmop(f"buffer_store_dwordx4 {vr(D1,4)}, v{T}, s[{S_WS}:{S_WS+3}], s51 offen offset:2560 sc1", "kvp")
    st(4)
    a(f"s_lshl_b32 s52, s12, 8\ns_add_u32 s52, s52, s2\ns_min_u32 s37, s52, 576\ns_mul_i32 s37, s37, 1152\nv_lshlrev_b32 v{T+3}, 4, v{LANE}\nv_cmp_gt_u32 vcc, 8, v{LANE}\nv_cndmask_b32 v{T+4}, v{T+2}, v{T+3}, vcc")
    a.vmop(f"buffer_load_dwordx4 {vr(AX,4)}, v{T+3}, s[{S_WO}:{S_WO+3}], s37 offen", "aux")
    a.vmop(f"buffer_load_dwordx4 {vr(AX+4,4)}, v{T+4}, s[{S_WO}:{S_WO+3}], s37 offen offset:1024", "aux")
    a("s_and_b32 s53, s2, 0xf8\ns_add_u32 s53, s53, s12\ns_mul_i32 s54, s53, 911\ns_lshr_b32 s54, s54, 16\ns_mul_i32 s37, s54, 72\ns_sub_u32 s55, s53, s37\ns_and_b32 s39, s2, 7")
    a(f"s_cmp_eq_u32 s54, 0\ns_cselect_b32 s74, s68, s70\ns_cselect_b32 s75, s69, s71\ns_cmp_ge_u32 s54, 2\ns_cselect_b32 s74, s72, s74\ns_cselect_b32 s75, s73, s75")
    a(f"s_movk_i32 s76, 9216\ns_movk_i32 s77, 1152\ns_cselect_b32 s76, s77, s76\ns_cselect_b32 s77, {576*1152}, s77\ns_mul_i32 s77, s77, s39\ns_mul_i32 s37, s76, s55\ns_lshl_b32 s37, s37, 3\ns_add_u32 s77, s77, s37\ns_add_u32 s77, s77, 1024")
    srd(a, S_AUX, 74, 576*9216)
    a(f"v_lshrrev_b32 v{T+3}, 3, v{LANE}\nv_and_b32 v{T+4}, 7, v{LANE}\nv_mul_lo_u32 v{T+5}, v{T+3}, s76\nv_lshl_add_u32 v{T+5}, v{T+4}, 4, v{T+5}")
    a.vmop(f"buffer_load_dwordx4 {vr(AX+8,4)}, v{T+5}, s[{S_AUX}:{S_AUX+3}], s77 offen", "aux")
    a(f"v_lshrrev_b32 v{T+5}, 1, v{T+4}\nv_mul_u32_u24 v{T+5}, 55296, v{T+5}\nv_and_b32 v{T+4}, 1, v{T+4}\nv_lshl_add_u32 v{T+5}, v{T+4}, 4, v{T+5}\nv_lshl_add_u32 v{V_AUX}, v{T+3}, 5, v{T+5}")
    a(f"s_mul_i32 s77, s39, {4*55296}\ns_mul_i32 s37, s54, 18432\ns_add_u32 s77, s77, s37\ns_lshl_b32 s37, s55, 8\ns_add_u32 s77, s77, s37\ns_add_u32 s77, s77, {WS_PK}\ns_cmp_ge_u32 s53, 216\ns_cselect_b32 s77, {OOB}, s77")
    hooks = {}
    def hq0():
        a.wait(vm=[("Q", 5)]); a("s_barrier")
    def hq1():
        a.wait(vm=[("Q", 8), "kvp"]); a("s_barrier")
        a(f"v_min_u32 v{T}, 1, v0\nv_lshlrev_b32 v{T}, 30, v{T}\nv_mov_b32 v{T+1}, 1\ns_lshl_b32 s37, s13, 4\ns_add_u32 s37, s37, s14")
        a.vmop(f"buffer_store_byte v{T+1}, v{T}, s[{S_DB}:{S_DB+3}], s37 offen sc1", "flag")
    hooks[0] = hq0; hooks[8] = hq1
    QA = ACC + 8
    qt = [(V_QB, 0, QA), (V_QB, 32, QA+4), (V_Q2, 0, QA+8), (V_CQ, 0, CSA)]
    gemm(qt, [], hooks, False)
    cs_publish(2, 320)
    a(f"v_lshlrev_b32 v{V_A}, 4, v{Q}\nv_add_u32 v{V_A}, {L_CS+320}, v{V_A}")
    a.wait(lg="all"); a("s_barrier")
    st(5)
    for t in range(3): a.lgop(f"ds_read_b128 {vr(CSR+4*t,4)}, v{V_A} offset:{64*t}", ("csq", t))
    a(f"v_mov_b32 v{KB+6}, 0\nv_mov_b32 v{KB+7}, 0")
    for t in range(3): correct(2 + t, CSR+4*t, KB+2*t, ("csq", t))
    phi_mfma()
    a.wait(vm=["aux"])
    a.vmop(f"buffer_store_dwordx4 {vr(AX+8,4)}, v{V_AUX}, s[{S_WS}:{S_WS+3}], s77 offen", "pk")
    a(f"v_and_b32 v{V_B}, 3, v{LANE}\nv_lshlrev_b32 v{V_B}, 2, v{V_B}\ns_lshl_b32 s78, s13, 4")
    a.vmop(f"buffer_load_dword v{V_C}, v{V_B}, s[{S_DB}:{S_DB+3}], s78 offen sc1", "poll")
    softmax()
    a(f"v_mov_b32 v{PH+10}, 0\nv_mov_b32 v{PH+11}, 0")
    st(6)
    a.wait(vm=["poll"])
    a(f"s_mov_b32 s79, 0x01010101\nv_cmp_eq_u32 vcc, s79, v{V_C}\ns_nop 0\ns_cmp_eq_u64 vcc, exec\ns_cbranch_scc0 {name}_slow")
    a.label(name + "_back")
    st(7)
    a(f"v_lshlrev_b32 v{T}, 4, v0\nv_cmp_gt_u32 vcc, 400, v0\nv_mov_b32 v{T+2}, {OOB}\nv_cndmask_b32 v{T}, v{T+2}, v{T}, vcc")
    for r in range(16):
        a.vmop(f"buffer_load_dwordx4 {vr(XF+4*r,4)}, v{T}, s[{S_WS}:{S_WS+3}], s50 offen sc1", ("pl", r))
        if r < 15: a("s_add_u32 s50, s50, 6400")
    a(f"s_mov_b32 s38, 0xffff0000\nv_lshlrev_b32 v{T+4}, 16, v{AX}\nv_and_b32 v{T+5}, s38, v{AX}")
    for i in range(1, 8): a(f"v_lshlrev_b32 v{T+6}, 16, v{AX+i}\nv_and_b32 v{T+7}, s38, v{AX+i}\nv_add_f32 v{T+4}, v{T+4}, v{T+6}\nv_add_f32 v{T+5}, v{T+5}, v{T+7}")
    a(f"v_add_f32 v{T+4}, v{T+4}, v{T+5}")
    for ctl in ("quad_perm:[1,0,3,2]", "quad_perm:[2,3,0,1]", "row_half_mirror", "row_mirror"):
        a(f"v_add_f32_dpp v{T+4}, v{T+4}, v{T+4} {ctl} row_mask:0xf bank_mask:0xf")
    allred("v_add_f32", T+4, T+5)
    a(f"v_mov_b32 v{T+5}, v{T+4}\nv_permlane32_swap_b32 v{T+5}, v{T+4}\nv_add_f32 v{T+4}, v{T+4}, v{T+5}\nv_mul_f32 v{T+4}, 0x3ae38e39, v{T+4}")
    a(f"v_cvt_pk_bf16_f32 v{T+5}, v{T+4}, v{T+4}\nv_and_b32 v{T+6}, s38, v{T+5}\nv_sub_f32 v{T+6}, v{T+4}, v{T+6}\nv_cvt_pk_bf16_f32 v{T+6}, v{T+6}, v{T+6}")
    a(f"v_cmp_eq_u32 vcc, 0, v{LANE}\nv_cndmask_b32 v{T+5}, v{T+6}, v{T+5}, vcc\nv_cmp_gt_u32 vcc, 2, v{LANE}\nv_lshlrev_b32 v{T+6}, 6, v{LANE}\nv_cndmask_b32 v{T+6}, v{T+2}, v{T+6}, vcc")
    a("s_mul_i32 s53, s52, 3641\ns_lshr_b32 s53, s53, 16\ns_mul_i32 s37, s53, 18\ns_sub_u32 s54, s52, s37")
    a("s_lshr_b32 s37, s53, 1\ns_lshl_b32 s37, s37, 7\ns_and_b32 s39, s53, 1\ns_lshl_b32 s39, s39, 5\ns_add_u32 s37, s37, s39\ns_lshl_b32 s39, s54, 1\ns_add_u32 s55, s37, s39")
    a("s_lshr_b32 s37, s53, 4\ns_lshl_b32 s37, s37, 7\ns_and_b32 s53, s53, 15\ns_lshl_b32 s53, s53, 2\ns_add_u32 s37, s37, s53\ns_add_u32 s37, s37, s39\ns_add_u32 s37, s37, 2016")
    a(f"s_cmp_ge_u32 s54, 16\ns_cselect_b32 s55, s37, s55\ns_add_u32 s55, s55, {WS_RM}\ns_cmp_ge_u32 s52, 576\ns_cselect_b32 s55, {OOB}, s55")
    a.vmop(f"buffer_store_short v{T+5}, v{T+6}, s[{S_WS}:{S_WS+3}], s55 offen", "rm")
    a(f"v_cmp_gt_u32 vcc, 16, v0\nv_lshlrev_b32 v{T+6}, 2, v0\nv_cndmask_b32 v{T+6}, v{T+2}, v{T+6}, vcc\ns_lshl_b32 s37, s2, 7\ns_add_u32 s37, s37, {WS_FLAG}")
    a.vmop(f"buffer_store_dword v{PH+10}, v{T+6}, s[{S_WS}:{S_WS+3}], s37 offen", "fz")
    a(f"v_min_u32 v{T+4}, 400, v0\nv_mul_u32_u24 v{T+5}, 1639, v{T+4}\nv_lshrrev_b32 v{T+5}, 16, v{T+5}\nv_mul_u32_u24 v{T+6}, 40, v{T+5}\nv_sub_u32 v{T+6}, v{T+4}, v{T+6}")
    a(f"v_mul_u32_u24 v{T+7}, 52, v{T+5}\nv_lshrrev_b32 v{T+7}, 8, v{T+7}\nv_mul_u32_u24 v{T+7}, {1600-40}, v{T+7}\nv_mul_u32_u24 v{T+6}, 40, v{T+6}\nv_lshl_add_u32 v{T+6}, v{T+5}, 3, v{T+6}")
    a(f"v_add_u32 v{T+6}, v{T+6}, v{T+7}\nv_add_u32 v{V_A}, {L_KVA}, v{T+6}")
    a(f"v_mul_u32_u24 v{T+4}, 20, v{Q}\nv_bfe_u32 v{T+5}, v{LANE}, 2, 2\nv_add_u32 v{T+4}, v{T+4}, v{T+5}\nv_mul_u32_u24 v{T+4}, 40, v{T+4}\nv_add_u32 v{T+4}, {L_KVA}, v{T+4}")
    a(f"v_and_b32 v{T+5}, 1, v{LANE}\nv_lshl_add_u32 v{T+5}, v{T+5}, 4, v{T+4}\nv_bfe_u32 v{T+6}, v{LANE}, 1, 1\nv_lshrrev_b32 v{T+7}, 5, v{LANE}\nv_cmp_eq_u32 vcc, v{T+6}, v{T+7}")
    a(f"v_mov_b32 v{T+6}, {L_Z}\nv_cndmask_b32 v{V_B}, v{T+6}, v{T+5}, vcc\nv_cndmask_b32 v{V_C}, v{T+6}, v{T+4}, vcc")
    for t in range(3): a(f"v_mov_b32 v{AF+12*t+10}, 0\nv_mov_b32 v{AF+12*t+11}, 0")
    for r in range(1, 16):
        a.wait(vm=[("pl", r)])
        for e in range(4): a(f"v_add_f32 v{XF+e}, v{XF+e}, v{XF+4*r+e}")
    a(f"v_cvt_pk_bf16_f32 v{XF}, v{XF}, v{XF+1}\nv_cvt_pk_bf16_f32 v{XF+1}, v{XF+2}, v{XF+3}")
    a.lgop(f"ds_write_b64 v{V_A}, {vr(XF,2)}", "kva")
    a.wait(lg="all"); a("s_barrier")
    st(8)
    for t in (2, 0, 1):
        for i in range(5): a.lgop(f"ds_read_b64_tr_b16 {vr(AF+12*t+2*i,2)}, v{V_B if t < 2 else V_C} offset:{160*i + (8*t if t < 2 else 32)}", ("na", t))
    a(f"s_lshr_b32 s37, s15, 2\ns_mul_i32 s46, s37, 73728\ns_and_b32 s37, s15, 3\ns_lshl_b32 s37, s37, 10\ns_add_u32 s46, s46, s37\ns_add_u32 s46, s46, {WS_OF}")
    a("s_lshr_b32 s37, s13, 3\ns_add_u32 s37, s37, 16\ns_lshl_b32 s37, s37, 12\ns_add_u32 s47, s46, s37\ns_bfe_u32 s37, s13, 0x20001\ns_lshl_b32 s37, s37, 8\ns_add_u32 s47, s47, s37")
    a("s_and_b32 s37, s13, 1\ns_lshl_b32 s37, s37, 3\ns_add_u32 s47, s47, s37\ns_lshl_b32 s37, s13, 12\ns_add_u32 s46, s46, s37")
    a(f"v_lshlrev_b32 v{T}, 4, v{LANE}\nv_lshlrev_b32 v{T+1}, 4, v{TOK}\nv_lshl_add_u32 v{T+1}, v{T+7}, 2, v{T+1}\nv_and_b32 v{T+3}, 1, v{Q}\nv_lshl_add_u32 v{T+1}, v{T+3}, 30, v{T+1}")
    for t in (2, 0, 1):
        a.wait(lg=[("na", t)])
        for s in range(3): a(f"v_mfma_f32_16x16x32_bf16 {vr(ACC+4*t,4)}, {vr(AF+12*t+4*s,4)}, {vr(PH+4*s,4)}, {vr(ACC+4*t,4) if s else 0}")
    a(f"v_add_f32 v{T+4}, 0x358637bd, v{ACC+10}\nv_rcp_f32 v{T+4}, v{T+4}")
    for i in (8, 9, 0, 1, 2, 3, 4, 5, 6, 7): a(f"v_mul_f32 v{ACC+i}, v{ACC+i}, v{T+4}")
    for i in range(5): a(f"v_cvt_pk_bf16_f32 v{T+8+i}, v{ACC+2*i}, v{ACC+2*i+1}")
    a.vmop(f"buffer_store_dwordx4 {vr(T+8,4)}, v{T}, s[{S_WS}:{S_WS+3}], s46 offen sc1", "o")
    a.vmop(f"buffer_store_dword v{T+12}, v{T+1}, s[{S_WS}:{S_WS+3}], s47 offen sc1", "o")
    if prof:
        st(9); a("s_waitcnt vmcnt(0)"); st(10); stamp_out(a, kidx, VST, S_WS, 12, E)
    a.label(E); a("s_endpgm")
    a.label(name + "_slow")
    a("s_mov_b32 s37, 0x40000")
    a.label(name + "_spin")
    a(f"s_sleep 1\nbuffer_load_dword v{V_C}, v{V_B}, s[{S_DB}:{S_DB+3}], s78 offen sc1\ns_waitcnt vmcnt(0)")
    a(f"v_cmp_eq_u32 vcc, s79, v{V_C}\ns_sub_u32 s37, s37, 1\ns_cmp_eq_u64 vcc, exec\ns_cbranch_scc1 {name}_back")
    a(f"s_cmp_lg_u32 s37, 0\ns_cbranch_scc1 {name}_spin\ns_branch {name}_back")
    return a.text(), kernel_desc(name, 256), f"kernel={name} grid=(256,1,1) block=(512,1,1) lds={LDS_SIZE}"
if __name__ == "__main__":
    t, n = fix_hazards(gen()[0]); print("pad", n, "lines", t.count("\n"), "lds", LDS_SIZE)
    open("k1_tmp.s", "w").write(assemble_file([gen(prof=1)]))
    assert all((i*52) >> 8 == i // 5 for i in range(41)) and all((i*7282) >> 16 == i // 9 for i in range(512))
    assert all((i*911) >> 16 == i // 72 for i in range(256)) and all((i*3641) >> 16 == i // 18 for i in range(576)) and all((i*1639) >> 16 == i // 40 for i in range(401))
```

```python
from asmlib import *
from layout import *
from k3 import stamp, stamp0, stamp_out, assemble_file
L_X = 73728; L_RM = L_X + 10240; LDS_SIZE = L_RM + 3072
def gen(name="proj_kernel", prof=0, kidx=1, LA=2, staux="sc1", extra=None):
    a = Asm()
    V_L16 = 1; V_D1 = 2; V_D2 = 3; V_DX = 4; V_LB = 5; V_RM = 9; V_XR = 10; V_MX = 14; V_ST = 15; T = 16
    FR = 24; ACC = 64; B = 84; XR = 156; VST = 170
    S_W = 16; S_X = 20; S_WS = 28
    a(kernel_head(name))
    if prof: stamp0(a)
    a(f"s_cmp_ge_u32 s2, 240\ns_cbranch_scc1 {name}_end")
    a("s_load_dwordx2 s[4:5], s[0:1], 24\ns_load_dwordx2 s[6:7], s[0:1], 0\ns_load_dwordx2 s[10:11], s[0:1], 80")
    a("s_and_b32 s13, s2, 7\ns_mul_i32 s13, s13, 30\ns_lshr_b32 s14, s2, 3\ns_add_u32 s13, s13, s14")
    a(f"s_cmp_ge_u32 s13, 234\ns_cbranch_scc1 {name}_end")
    a(f"v_lshrrev_b32 v{T}, 6, v0\nv_and_b32 v{T+1}, 63, v0\nv_readfirstlane_b32 s12, v{T}")
    a("s_mul_i32 s14, s13, 7282\ns_lshr_b32 s14, s14, 16\ns_mul_i32 s15, s14, 9\ns_sub_u32 s15, s13, s15")
    a("s_mul_i32 s14, s14, 5\ns_add_u32 s14, s14, s12\ns_min_u32 s14, s14, 127")
    a(f"v_lshlrev_b32 v{V_L16}, 4, v{T+1}")
    a(f"v_lshrrev_b32 v{T+2}, 3, v{T+1}\nv_and_b32 v{T+3}, 7, v{T+1}\nv_and_b32 v{T+4}, 6, v{T+2}\nv_xor_b32 v{T+3}, v{T+3}, v{T+4}\nv_lshlrev_b32 v{T+3}, 4, v{T+3}")
    a(f"v_mul_u32_u24 v{V_DX}, 1152, v{T+2}\nv_add_u32 v{V_DX}, v{V_DX}, v{T+3}")
    a(f"v_lshrrev_b32 v{T+4}, 2, v{T+2}\nv_mul_u32_u24 v{T+5}, {4*1152}, v{T+4}\nv_add_u32 v{V_D1}, v{V_DX}, v{T+5}")
    a(f"v_mul_u32_u24 v{T+5}, 72, v{T+4}\nv_bfe_u32 v{T+6}, v{T+2}, 1, 1\nv_mul_u32_u24 v{T+6}, 18, v{T+6}\nv_and_b32 v{T+7}, 1, v{T+2}\nv_add3_u32 v{T+5}, v{T+5}, v{T+6}, v{T+7}")
    a(f"v_mul_u32_u24 v{T+5}, 1152, v{T+5}\nv_add_u32 v{V_D2}, v{T+5}, v{T+3}")
    a("s_and_b32 s32, s12, 1\ns_bfe_u32 s33, s12, 0x10001\ns_lshl_b32 s34, s15, 7")
    a(f"s_mul_i32 s40, s32, {18*1152}\ns_mul_i32 s37, s33, {4*1152}\ns_add_u32 s40, s40, s37\ns_add_u32 s40, s40, s34")
    a(f"s_mul_i32 s41, s32, {144*1152}\ns_mul_i32 s37, s33, {36*1152}\ns_add_u32 s41, s41, s37\ns_add_u32 s41, s41, s34\ns_add_u32 s41, s41, {16*1152}")
    a(f"s_lshr_b32 s37, s14, 2\ns_mul_i32 s43, s37, 73728\ns_and_b32 s37, s14, 3\ns_lshl_b32 s37, s37, 10\ns_add_u32 s43, s43, s37\ns_add_u32 s42, s43, {WS_OF}")
    a(f"s_lshl_b32 s37, s15, 13\ns_add_u32 s43, s43, s37\ns_add_u32 s43, s43, {WS_HC}\ns_add_u32 s47, s43, 4096")
    a(f"s_mul_i32 s44, s14, {16*1152}\ns_add_u32 s44, s44, s34\ns_add_u32 s48, s44, {8*1152-1024}")
    a(f"s_lshl_b32 s45, s14, 6\ns_add_u32 s45, s45, {WS_MEANX}\ns_lshl_b32 s46, s14, 10\ns_add_u32 s46, s46, {WS_STATS}")
    a(f"s_lshl_b32 s35, s12, 10\ns_lshl_b32 s36, s12, 11\ns_add_u32 s36, s36, {L_X}\ns_mov_b32 s49, {WS_RM}")
    a("s_waitcnt lgkmcnt(0)")
    srd(a, S_W, 4, 576*1152); srd(a, S_X, 6, 2048*1152); srd(a, S_WS, 10, WS_SIZE)
    def late():
        a(f"v_lshrrev_b32 v{T+2}, 2, v{T+1}\nv_and_b32 v{T+3}, 3, v{T+1}\nv_lshlrev_b32 v{T+3}, 3, v{T+3}\nv_bfe_u32 v{T+4}, v{T+1}, 3, 2")
        a(f"v_lshl_add_u32 v{T+2}, v{T+2}, 7, v{T+3}")
        for t in range(4): a(f"v_xor_b32 v{T+3}, {t}, v{T+4}\nv_lshl_add_u32 v{V_LB+t}, v{T+3}, 5, v{T+2}")
        a(f"v_lshrrev_b32 v{T+2}, 4, v{T+1}\nv_and_b32 v{T+3}, 1, v{T+1}\nv_lshlrev_b32 v{T+3}, 6, v{T+3}\nv_lshl_add_u32 v{V_RM}, v{T+2}, 4, v{T+3}\nv_add_u32 v{V_RM}, {L_RM}, v{V_RM}")
        a(f"v_and_b32 v{T+3}, 15, v{T+1}\nv_lshlrev_b32 v{T+2}, 3, v{T+2}\nv_lshl_add_u32 v{T+2}, v{T+3}, 7, v{T+2}\nv_add_u32 v{T+2}, s36, v{T+2}\nv_bfe_u32 v{T+4}, v{T+1}, 1, 2")
        for t in range(4): a(f"v_xor_b32 v{T+5}, {t}, v{T+4}\nv_lshl_add_u32 v{V_XR+t}, v{T+5}, 5, v{T+2}")
    a(f"v_and_b32 v{V_ST}, 15, v{T+1}\nv_lshlrev_b32 v{V_ST}, 2, v{V_ST}")
    a(f"s_cmp_eq_u32 s12, 4\ns_cbranch_scc1 {name}_w4")
    def body(dma):
        a.reset_counters()
        def loads(c):
            for s in range(3*c, 3*c+3):
                if dma:
                    a(f"s_add_u32 m0, s35, {s*4096}")
                    if s < 16:
                        a.vmop(f"buffer_load_dwordx4 v{V_D1}, s[{S_W}:{S_W+3}], s40 offen lds", ("W", c)); a(f"s_add_u32 s40, s40, {36*1152}")
                    else:
                        a.vmop(f"buffer_load_dwordx4 v{V_D2}, s[{S_W}:{S_W+3}], s41 offen lds", ("W", c)); a(f"s_add_u32 s41, s41, {288*1152}")
                a.vmop(f"buffer_load_dwordx4 {vr(B+4*s,4)}, v{V_L16}, s[{S_WS}:{S_WS+3}], s42 offen", ("B", s)); a("s_add_u32 s42, s42, 4096")
            if c == 5:
                a("s_mov_b32 m0, s36")
                a.vmop(f"buffer_load_dword v{V_MX}, v{V_ST}, s[{S_WS}:{S_WS+3}], s45 offen", "x")
                a.vmop(f"buffer_load_dwordx4 v{V_DX}, s[{S_X}:{S_X+3}], s44 offen lds", "x")
                a.vmop(f"buffer_load_dwordx4 v{V_DX}, s[{S_X}:{S_X+3}], s48 offen offset:1024 lds", "x")
        def reads(s):
            f = FR + 20*(s % 2); off = s*4096
            for t in range(4):
                if off >= 65536 - 2048 and False: pass
                for j in range(2):
                    a.lgop(f"ds_read_b64_tr_b16 {vr(f+4*t+2*j,2)}, v{V_LB+t} offset:{(off + 2048*j) % 65536}", ("rd", s, t))
            a.lgop(f"ds_read_b128 {vr(f+16,4)}, v{V_RM} offset:{s*128}", ("rd", s, 4))
        if not dma:
            a(f"s_mov_b32 m0, {L_RM}")
            for i in range(3): a.vmop(f"buffer_load_dwordx4 v{V_L16}, s[{S_WS}:{S_WS+3}], s49 offen offset:{1024*i} lds", ("W", 0))
        for c in range(LA): loads(c)
        late()
        for c in range(6):
            if dma or c == 0: a.wait(vm=[("W", c)])
            a("s_barrier")
            if prof and c == 0: stamp(a, 1, VST)
            reads(3*c)
            if c + LA < 6: loads(c + LA)
            for s in range(3*c, 3*c+3):
                f = FR + 20*(s % 2)
                a.wait(vm=[("B", s)], lg=[("rd", s, 2)])
                if s == 15:
                    for t in range(4): a(f"v_add_u32 v{V_LB+t}, 0x10000, v{V_LB+t}")
                if s % 3 < 2: reads(s + 1)
                for t in range(5):
                    a.wait(lg=[("rd", s, t)])
                    acc = vr(ACC+4*t, 4)
                    a(f"v_mfma_f32_16x16x32_bf16 {acc}, {vr(f+4*t,4)}, {vr(B+4*s,4)}, {acc if s else 0}")
        a.wait(vm=["x"])
        for t in range(4): a.lgop(f"ds_read_b64 {vr(XR+2*t,2)}, v{V_XR+t}", "xr")
        a(f"s_mov_b32 s38, 0xffff0000\nv_add_f32 v{V_MX}, v{V_MX}, v{ACC+16}\nv_add_f32 v{V_MX}, v{V_MX}, v{ACC+17}")
        for i in range(16): a(f"v_sub_f32 v{ACC+i}, v{ACC+i}, v{V_MX}")
        a.wait(lg=["xr"])
        for i in range(8):
            a(f"v_lshlrev_b32 v{T}, 16, v{XR+i}\nv_and_b32 v{T+2}, s38, v{XR+i}\nv_add_f32 v{ACC+2*i}, v{ACC+2*i}, v{T}\nv_add_f32 v{ACC+2*i+1}, v{ACC+2*i+1}, v{T+2}")
            a(f"v_cvt_pk_bf16_f32 v{XR+i}, v{ACC+2*i}, v{ACC+2*i+1}")
            if i % 4 == 3: a.vmop(f"buffer_store_dwordx4 {vr(XR+i-3,4)}, v{V_L16}, s[{S_WS}:{S_WS+3}], s{43 if i == 3 else 47} offen {staux}", "st")
        a(f"v_mul_f32 v{T}, v{ACC}, v{ACC}\nv_mul_f32 v{T+2}, v{ACC+1}, v{ACC+1}")
        for i in range(2, 16): a(f"v_fmac_f32 v{T+2*(i%2)}, v{ACC+i}, v{ACC+i}")
        a(f"v_add_f32 v{T}, v{T}, v{T+2}\nv_mov_b32 v{T+2}, v{T}\nv_permlane16_swap_b32 v{T+2}, v{T}\nv_add_f32 v{T}, v{T}, v{T+2}")
        a(f"v_mov_b32 v{T+2}, v{T}\nv_permlane32_swap_b32 v{T+2}, v{T}\nv_add_f32 v{T}, v{T}, v{T+2}")
        a("s_mov_b64 exec, 0xffff\ns_lshl_b32 s37, s15, 6\ns_add_u32 s37, s37, s46")
        a.vmop(f"buffer_store_dword v{T}, v{V_ST}, s[{S_WS}:{S_WS+3}], s37 offen {staux}", "st")
        a(f"s_cmp_lg_u32 s15, 0\ns_cbranch_scc1 {name}_nm{int(dma)}")
        a(f"buffer_store_dword v{V_MX}, v{V_ST}, s[{S_WS}:{S_WS+3}], s46 offen offset:576 {staux}")
        a.label(f"{name}_nm{int(dma)}")
        a("s_mov_b64 exec, -1")
    body(True)
    if prof:
        stamp(a, 2, VST); a("s_waitcnt vmcnt(0)"); stamp(a, 3, VST); stamp_out(a, kidx, VST, S_WS, 12, name + "_end")
    a.label(name + "_end"); a("s_endpgm")
    a.label(name + "_w4")
    body(False)
    a("s_endpgm")
    return a.text(), kernel_desc(name, 176), f"kernel={name} grid=(240,1,1) block=(320,1,1) lds={LDS_SIZE}"
if __name__ == "__main__":
    t, n = fix_hazards(gen()[0], True); print("pad", n, "lines", t.count("\n"))
    open("k2_tmp.s", "w").write(assemble_file([gen(prof=1)]))
    assert all((i*7282) >> 16 == i // 9 for i in range(240))
```

```python
from asmlib import *
from layout import *

def stamp(a, i, vst):
    a(f"s_memtime s[80:81]\ns_memrealtime s[82:83]\ns_waitcnt lgkmcnt(0)\nv_writelane_b32 v{vst}, s80, {2*i}\nv_writelane_b32 v{vst}, s82, {2*i+1}")
def stamp0(a):
    a("s_memtime s[84:85]\ns_memrealtime s[86:87]")
def stamp_out(a, kidx, vst, srd_ws, swave, end):
    a(f"s_cmp_lg_u32 s{swave}, 0\ns_cbranch_scc1 {end}")
    a(f"v_writelane_b32 v{vst}, s84, 0\nv_writelane_b32 v{vst}, s86, 1")
    a(f"s_lshl_b32 s35, s2, 8\ns_add_u32 s35, s35, {WS_STAMP + kidx*MB}\nv_and_b32 v9, 63, v0\nv_lshlrev_b32 v9, 2, v9")
    a(f"buffer_store_dword v{vst}, v9, s[{srd_ws}:{srd_ws+3}], s35 offen\ns_waitcnt vmcnt(0)")
VST = 250
R = 12
SLOT = 12288
V_DW = 1
V_LB = 4
V_L16 = 7
V_T = 8
FR = 16
ACC = 40
HR = 136
XV = 208
S_W = 16; S_WS = 28
def xreg(i):
    return vr(4*i, 4, "a") if i < 64 else vr(XV + 4*(i-64), 4)

class Sched:
    def __init__(self, a, groups, barriers, side_v, side_m, vm_gap=4):
        self.a = a; self.g = groups; self.bar = barriers; self.sv = side_v; self.sm = side_m; self.vm_gap = vm_gap
        self.qv = []; self.qm = []; self.stamps = {}
    def reads(self, gi):
        g = self.g[gi]; out = []
        slot = g["unit"] % R
        base = V_LB + slot // 5
        for ks in range(2):
            off = (slot % 5) * SLOT + g["off"][ks]
            r = FR + 8 * (gi % 3) + 4 * ks
            out += [f"ds_read_b64_tr_b16 {vr(r,2)}, v{base} offset:{off}", f"ds_read_b64_tr_b16 {vr(r+2,2)}, v{base} offset:{off + 16*96}"]
        return out
    def run(self):
        a = self.a; G = self.g
        for gi in (0, 1):
            for x in self.reads(gi): a.lgop(x, ("rd", gi))
        since_vm = 99
        for gi, g in enumerate(G):
            for tag in g.get("must_done", ()):
                assert not any(t == tag for t, _ in self.qv + self.qm), f"deadline missed {tag} at group {gi}"
            if gi in self.stamps: stamp(a, self.stamps[gi], VST)
            if gi in self.bar:
                a.wait(vm=[("W", self.bar[gi])] + g.get("vm", []), lg=[("rd", gi)])
                a("s_barrier"); a.last_bar_unit = g["unit"]
            else:
                a.wait(vm=g.get("vm", []), lg=[("rd", gi)])
            rq = self.reads(gi + 2) if gi + 2 < len(G) else []
            self.qv += self.sv.get(gi, []); self.qm += self.sm.get(gi, [])
            r0 = FR + 8 * (gi % 3)
            n = 0
            for tk in range(4):
                for ks in range(2):
                    acc = vr(g["acc"] + 4 * tk, 4)
                    c = "0" if (g["first"] and ks == 0) else acc
                    a(f"v_mfma_f32_16x16x32_bf16 {acc}, {vr(r0+4*ks,4)}, {g['b'][ks][tk]}, {c}")
                    slots = 2
                    if n % 2 == 0 and rq:
                        a.lgop(rq.pop(0), ("rd", gi + 2)); slots -= 1
                    if n == 7: slots -= 1
                    since_vm += 1
                    while slots > 0:
                        if self.qm and (since_vm >= self.vm_gap or not self.qm[0][1].isvm):
                            t, op = self.qm.pop(0); op(); slots -= 1
                            if op.isvm: since_vm = 0
                        elif self.qv:
                            t, op = self.qv.pop(0); op(); slots -= 1
                        else: break
                    n += 1
        while self.qv or self.qm:
            if self.qv: self.qv.pop(0)[1]()
            else: self.qm.pop(0)[1]()

class Op:
    def __init__(self, a, s, vm=False, tag=None, then=None):
        self.a = a; self.s = s; self.isvm = vm; self.tag = tag; self.then = then
    def __call__(self):
        if self.isvm:
            if self.tag and self.tag[0] == "W":
                assert self.tag[1] - R + 1 <= getattr(self.a, "last_bar_unit", 0), "LDS slot still in use"
            self.a.vmop(self.s, self.tag)
        else: self.a(self.s)
        if self.then: self.then()

def common_setup(a, name, stride, prof, rot=0):
    a(kernel_head(name))
    if prof: stamp0(a)
    a(f"s_cmp_ge_u32 s2, 256\ns_cbranch_scc1 {name}_end")
    a("s_load_dwordx4 s[4:7], s[0:1], 40\ns_load_dwordx2 s[8:9], s[0:1], 56\ns_load_dwordx2 s[10:11], s[0:1], 80")
    a("v_lshrrev_b32 v8, 6, v0\nv_and_b32 v9, 63, v0\nv_readfirstlane_b32 s12, v8")
    a(f"v_lshlrev_b32 v{V_L16}, 4, v9")
    for j in range(3):
        a(f"v_add_u32 v10, {64*j}, v9\nv_mul_u32_u24 v11, 10923, v10\nv_lshrrev_b32 v11, 16, v11")
        a(f"v_mul_u32_u24 v12, 6, v11\nv_sub_u32 v{13+j}, v10, v12")
        a(f"v_mul_u32_u24 v11, {stride}, v11\nv_lshl_add_u32 v{V_DW+j}, v{13+j}, 4, v11")
        if j: a(f"v_subrev_u32 v{V_DW+j}, {1024*j}, v{V_DW+j}")
    a(f"v_lshrrev_b32 v10, 2, v9\nv_mul_u32_u24 v10, 96, v10\nv_and_b32 v11, 3, v9\nv_lshl_add_u32 v{V_LB}, v11, 3, v10")
    a(f"v_add_u32 v{V_LB+1}, {5*SLOT}, v{V_LB}\nv_add_u32 v{V_LB+2}, {10*SLOT}, v{V_LB}")
    a("s_and_b32 s13, s2, 7\ns_bfe_u32 s14, s2, 0x20003\ns_lshr_b32 s15, s2, 5")
    a("s_lshl_b32 s15, s15, 2\ns_add_u32 s15, s15, s12")
    a("s_and_b32 s32, s12, 1\ns_lshr_b32 s33, s12, 1\ns_mul_i32 s34, s12, 3072")
    a(f"s_mul_i32 s36, s14, {rot}")

def wrap_ops(a, s, step, lim_s, span):
    return [Op(a, f"s_add_u32 s{s}, s{s}, {step}"), Op(a, f"s_cmp_ge_u32 s{s}, s{lim_s}\ns_cselect_b32 s37, {span}, 0"), Op(a, f"s_sub_u32 s{s}, s{s}, s37")]

def dma_unit(a, u, s_off):
    ops = [Op(a, f"s_add_u32 m0, s34, {(u % R) * SLOT}")]
    for j in range(3):
        ops.append(Op(a, f"buffer_load_dwordx4 v{V_DW+j}, s[{S_W}:{S_W+3}], s{s_off} offen offset:{1024*j} lds", vm=True, tag=("W", u)))
    return ops
def b_unit(a, u, s_off, aux=""):
    ops = []
    for ks in range(2):
        for tk in range(4):
            ops.append(Op(a, f"buffer_load_dwordx4 {xreg((2*u+ks)*4+tk)}, v{V_L16}, s[{S_WS}:{S_WS+3}], s{s_off} offen offset:{1024*tk} {aux}", vm=True, tag=("B", u)))
        if ks == 0: ops.append(Op(a, f"s_add_u32 s{s_off}, s{s_off}, 4096"))
    return ops

def barrier_plan(groups, starts):
    starts = sorted(starts); out = {}
    for i, s in enumerate(starts):
        nxt = starts[i+1] if i + 1 < len(starts) else len(groups)
        out[s] = groups[min(nxt + 1, len(groups) - 1)]["unit"]
    return out

def gen_p1(name="ffn1_kernel", prof=False, LA=3, staux="sc1", kidx=2, rot=0, vm_gap=4):
    a = Asm()
    common_setup(a, name, 9216, prof, rot)
    a("s_mul_i32 s40, s13, 1152\ns_mul_i32 s37, s14, 288\ns_add_u32 s40, s40, s37\ns_and_b32 s45, s14, 1\ns_lshl_b32 s37, s45, 5")
    for j in range(3): a(f"v_add_u32 v{V_DW+j}, s37, v{V_DW+j}")
    a(f"s_mul_i32 s37, s32, {32*9216}\ns_add_u32 s40, s40, s37\ns_add_u32 s41, s40, {576*9216}\ns_mul_i32 s37, s36, {64*9216}\ns_add_u32 s40, s40, s37")
    a(f"s_mul_i32 s42, s15, 73728\ns_add_u32 s42, s42, {WS_HC}\ns_add_u32 s43, s42, 73728\ns_lshl_b32 s37, s36, 13\ns_add_u32 s42, s42, s37")
    a(f"s_lshl_b32 s44, s13, 5\ns_add_u32 s44, s44, s15\ns_mul_i32 s44, s44, 73728\ns_add_u32 s44, s44, {WS_H}")
    a("s_lshr_b32 s37, s14, 1\ns_mul_i32 s37, s37, 36864\ns_add_u32 s44, s44, s37")
    a("s_lshl_b32 s37, s45, 3\ns_add_u32 s46, s44, s37\ns_add_u32 s46, s46, 16384")
    a("s_mul_i32 s37, s45, 20480\ns_add_u32 s44, s44, s37")
    a("s_mul_i32 s47, s45, 288")
    for j in range(3):
        a(f"v_cmp_le_u32 vcc, 4, v{13+j}\nv_mov_b32 v10, s47\nv_cndmask_b32 v10, 0, v10, vcc\nv_sub_u32 v{13+j}, 96, v10")
    a("s_waitcnt lgkmcnt(0)")
    a("s_cmp_eq_u32 s33, 0\ns_cselect_b32 s4, s4, s6\ns_cselect_b32 s5, s5, s7")
    srd(a, S_W, 4, 576*9216); srd(a, S_WS, 10, WS_SIZE)
    groups = []
    for p in range(3):
        for u in range(9):
            for t in range(6):
                groups.append(dict(unit=9*p+u, off=[(t % 2) * 6144 + ks * 3072 + (t // 2) * 32 for ks in range(2)], acc=ACC + 16*t,
                                   b=[[xreg((2*u+ks)*4+tk) for tk in range(4)] for ks in range(2)], first=(u == 0),
                                   vm=[("B", u)] if (p == 0 and t == 0) else [], must_done=[]))
    def w_ops(U):
        ops = []
        if U in (9, 18):
            for j in range(3):
                ops.append(Op(a, f"v_add_u32 v{V_DW+j}, 96, v{V_DW+j}" if U == 9 else f"v_add_u32 v{V_DW+j}, v{13+j}, v{V_DW+j}"))
        return ops + dma_unit(a, U, 40) + wrap_ops(a, 40, 64*9216, 41, 576*9216)
    def x_ops(u):
        return b_unit(a, u, 42) + wrap_ops(a, 42, 4096, 43, 73728)
    for u in range(LA):
        for op in w_ops(u) + x_ops(u): op()
    sm = {}; sv = {}
    nextW = LA
    DEEP = 8
    for U in range(27):
        ops = []
        if U + LA < 9:
            ops += w_ops(nextW) + x_ops(U + LA); nextW += 1
        else:
            k = 0
            while nextW < 27 and nextW <= U + DEEP and k < ((1 if nextW <= U + 3 else 0) if U % 9 in (8, 0) else 3):
                ops += w_ops(nextW); nextW += 1; k += 1
        sm[6*U] = [(None, o) for o in ops]
    starts = [6*U - 2 for U in range(1, 27) if U <= 13 or U % 3 == 1]
    bars = barrier_plan(groups, [0] + starts); first_need = bars.pop(0)
    sch = Sched(a, groups, bars, sv, sm, vm_gap)
    def hreg(i, tk):
        return HR + 16 * (i // 2) + 4 * tk + 2 * (i % 2) if i < 8 else HR + 64 + 2 * tk
    for p in range(3):
        for pr in range(3):
            i = 3 * p + pr
            ops = []
            G = ACC + 32 * pr; Uu = G + 16
            for tk in range(4):
                for r in range(4):
                    ops.append(Op(a, f"v_mul_f32 v{G+4*tk+r}, v{G+4*tk+r}, v{Uu+4*tk+r}"))
                h = hreg(i, tk)
                ops.append(Op(a, f"v_cvt_pk_bf16_f32 v{h}, v{G+4*tk}, v{G+4*tk+1}"))
                st = None
                if i % 2 == 1:
                    st = [Op(a, f"buffer_store_dwordx4 {vr(h-2,4)}, v{V_L16}, s[{S_WS}:{S_WS+3}], s44 offen offset:{1024*tk} {staux}", vm=True, tag=("H", i))]
                    if tk == 3: st.append(Op(a, "s_add_u32 s44, s44, 4096"))
                elif i == 8:
                    st = [Op(a, f"buffer_store_dwordx2 {vr(h,2)}, v{V_L16}, s[{S_WS}:{S_WS+3}], s46 offen offset:{1024*tk} {staux}", vm=True, tag=("H", i))]
                ops.append(Op(a, f"v_cvt_pk_bf16_f32 v{h+1}, v{G+4*tk+2}, v{G+4*tk+3}",
                              then=(lambda st=st: sch.qm.extend((None, o) for o in st)) if st else None))
            gi = 54 * p + 48 + 2 * pr + 2
            items = [(("ep", i), o) for o in ops]
            if gi < len(groups): sv.setdefault(gi, []).extend(items)
            else: tail = items
            if p < 2: groups[54 * (p + 1) + 2 * pr]["must_done"].append(("ep", i))
    a.wait(vm=[("W", first_need)])
    a("s_barrier")
    if prof: stamp(a, 1, VST); sch.stamps = {18*i: 3 + i for i in range(1, 9)} if prof > 1 else {}
    sch.run()
    sch.qv += tail
    while sch.qv or sch.qm:
        if sch.qm: sch.qm.pop(0)[1]()
        else: sch.qv.pop(0)[1]()
    if prof:
        stamp(a, 2, VST); a("s_waitcnt vmcnt(0)"); stamp(a, 3, VST)
        stamp_out(a, kidx, VST, S_WS, 12, name + "_end")
    a.label(name + "_end"); a("s_endpgm")
    return a.text(), kernel_desc(name, 512, accum=256), f"kernel={name} grid=(256,1,1) block=(256,1,1) lds={R*SLOT}"

def gen_p2(name="ffn2_kernel", prof=False, LA=3, staux="sc1", kidx=3, rot=0, vm_gap=4):
    a = Asm()
    common_setup(a, name, 1152, prof, rot)
    KS = 32 * 1152
    a(f"s_mul_i32 s41, s13, {576*1152}\ns_mul_i32 s37, s14, 288\ns_add_u32 s41, s41, s37")
    a(f"s_mul_i32 s45, s36, {2*KS}")
    a(f"s_mul_i32 s37, s12, {KS}\ns_add_u32 s48, s41, s37\ns_add_u32 s48, s48, s45\ns_add_u32 s48, s48, 192\ns_add_u32 s49, s41, {18*KS+192}")
    a(f"s_mul_i32 s37, s33, 96\ns_add_u32 s41, s41, s37\ns_mul_i32 s37, s32, {KS}\ns_add_u32 s40, s41, s37\ns_add_u32 s40, s40, s45\ns_add_u32 s41, s41, {18*KS}")
    a(f"s_lshl_b32 s44, s13, 5\ns_add_u32 s44, s44, s15\ns_mul_i32 s44, s44, 73728")
    a(f"s_add_u32 s42, s44, {WS_H}\ns_add_u32 s43, s42, 73728\ns_lshl_b32 s37, s36, 13\ns_add_u32 s42, s42, s37")
    a(f"s_mul_i32 s37, s14, 18432\ns_add_u32 s44, s44, s37\ns_add_u32 s44, s44, {WS_PART}\ns_add_u32 s46, s44, 9216")
    a("s_waitcnt lgkmcnt(0)")
    srd(a, S_W, 8, 4608*1152); srd(a, S_WS, 10, WS_SIZE)
    groups = []
    for u in range(9):
        for t in range(6):
            groups.append(dict(unit=u, off=[(t // 3) * 6144 + ks * 3072 + (t % 3) * 32 for ks in range(2)], acc=ACC + 16*t,
                               b=[[xreg((2*u+ks)*4+tk) for tk in range(4)] for ks in range(2)], first=(u == 0),
                               vm=[("B", u)] if t == 0 else [], must_done=[]))
    for h in range(9):
        for t in range(3):
            groups.append(dict(unit=9 + h // 2, off=[(h % 2) * 6144 + ks * 3072 + t * 32 for ks in range(2)], acc=ACC + 16*t,
                               b=[[xreg((2*h+ks)*4+tk) for tk in range(4)] for ks in range(2)], first=(h == 0), vm=[], must_done=[]))
    def w_ops(U):
        if U < 9: return dma_unit(a, U, 40) + wrap_ops(a, 40, 2*KS, 41, 18*KS)
        return dma_unit(a, U, 48) + wrap_ops(a, 48, 4*KS, 49, 18*KS)
    def x_ops(u):
        return b_unit(a, u, 42) + wrap_ops(a, 42, 4096, 43, 73728)
    for u in range(LA):
        for op in w_ops(u) + x_ops(u): op()
    sm = {}; sv = {}
    nextW = LA
    for U in range(14):
        ops = []
        if U + LA < 9:
            ops += w_ops(nextW) + x_ops(U + LA); nextW += 1
        else:
            k = 0
            while nextW < 14 and k < (1 if U in (8, 9) else 3):
                ops += w_ops(nextW); nextW += 1; k += 1
        sm[6*U] = [(None, o) for o in ops]
    starts = [6*U - 2 for U in range(1, 13)]
    bars = barrier_plan(groups, [0] + starts); first_need = bars.pop(0)
    sch = Sched(a, groups, bars, sv, sm, vm_gap)
    tail = []
    for t in range(9):
        A = ACC + 16 * (t % 6)
        ops = []
        for tp in range(2):
            b = A + 8 * tp
            for e in range(4):
                st = None
                if e == 3:
                    st = [Op(a, f"buffer_store_dwordx4 {vr(b,4)}, v{V_L16}, s[{S_WS}:{S_WS+3}], s{44+2*tp} offen offset:{1024*(t%4)} {staux}", vm=True, tag=("P", t))]
                    if t % 4 == 3: st.append(Op(a, f"s_add_u32 s{44+2*tp}, s{44+2*tp}, 4096"))
                ops.append(Op(a, f"v_cvt_pk_bf16_f32 v{b+e}, v{b+2*e}, v{b+2*e+1}",
                              then=(lambda st=st, t=t: sch.qm.extend((("ep", t), o) for o in st)) if st else None))
        gi = (48 + t + 1) if t < 6 else (54 + 24 + (t - 6) + 1)
        items = [(("ep", t), o) for o in ops]
        if gi < len(groups): sv.setdefault(gi, []).extend(items)
        else: tail += items
        if t < 3: groups[54 + t]["must_done"].append(("ep", t))
    a.wait(vm=[("W", first_need)])
    a("s_barrier")
    if prof: stamp(a, 1, VST); sch.stamps = {18*i: 3 + i for i in range(1, 9)} if prof > 1 else {}
    sch.run()
    sch.qv += tail
    while sch.qv or sch.qm:
        if sch.qm: sch.qm.pop(0)[1]()
        else: sch.qv.pop(0)[1]()
    if prof:
        stamp(a, 2, VST); a("s_waitcnt vmcnt(0)"); stamp(a, 3, VST)
        stamp_out(a, kidx, VST, S_WS, 12, name + "_end")
    a.label(name + "_end"); a("s_endpgm")
    return a.text(), kernel_desc(name, 512, accum=256), f"kernel={name} grid=(256,1,1) block=(256,1,1) lds={R*SLOT}"

def gen_k4(name="red_kernel", prof=False, kidx=4, newmap=True):
    a = Asm()
    a(kernel_head(name))
    if prof: stamp0(a)
    a(f"s_cmp_ge_u32 s2, 256\ns_cbranch_scc1 {name}_end")
    a("s_load_dwordx2 s[8:9], s[0:1], 64\ns_load_dwordx2 s[10:11], s[0:1], 80")
    a("v_lshrrev_b32 v8, 6, v0\nv_and_b32 v9, 63, v0\nv_readfirstlane_b32 s12, v8")
    a("v_lshlrev_b32 v1, 4, v0")
    a("s_lshr_b32 s13, s2, 3\ns_bfe_u32 s14, s2, 0x20001\ns_and_b32 s15, s2, 1")
    a(f"s_mul_i32 s20, s2, 9216\ns_add_u32 s20, s20, {WS_PART}")
    if newmap: a("s_lshl_b32 s21, s14, 3\ns_add_u32 s21, s21, s12\ns_add_u32 s23, s14, 32\ns_cmp_eq_u32 s12, 8\ns_cselect_b32 s21, s23, s21")
    else: a("s_mul_i32 s21, s14, 9\ns_add_u32 s21, s21, s12")
    a(f"s_mul_i32 s22, s13, 73728\ns_lshr_b32 s23, s21, 1\ns_lshl_b32 s23, s23, 12\ns_add_u32 s22, s22, s23\ns_and_b32 s23, s21, 1\ns_lshl_b32 s23, s23, 3\ns_add_u32 s22, s22, s23")
    a(f"s_lshl_b32 s23, s15, 11\ns_add_u32 s22, s22, s23\ns_add_u32 s22, s22, {WS_HC}")
    a("v_lshlrev_b32 v2, 4, v9")
    a("s_lshl_b32 s24, s13, 6\ns_lshl_b32 s23, s15, 5\ns_add_u32 s24, s24, s23")
    a(f"s_lshl_b32 s25, s24, 6\ns_add_u32 s25, s25, {WS_STATS}")
    a("v_and_b32 v10, 15, v9\nv_lshlrev_b32 v3, 2, v10\nv_lshlrev_b32 v27, 2, v9")
    a("v_mul_u32_u24 v4, 1152, v10\nv_lshrrev_b32 v11, 4, v9\nv_lshl_add_u32 v4, v11, 3, v4")
    a("s_mul_i32 s26, s24, 1152\ns_lshl_b32 s23, s21, 5\ns_add_u32 s26, s26, s23\ns_add_u32 s27, s26, 18432")
    a("s_waitcnt lgkmcnt(0)")
    srd(a, 28, 10, WS_SIZE); srd(a, 16, 8, 2048*1152)
    P = 40
    for X in range(8):
        a.vmop(f"buffer_load_dwordx4 {vr(P+4*X,4)}, v1, s[28:31], s20 offen", ("p", X))
        if X < 7: a(f"s_add_u32 s20, s20, {32*73728}")
    for k in range(2):
        a.vmop(f"buffer_load_dword v{12+8*k}, v27, s[28:31], s25 offen offset:{1024*k}", "st")
        a.vmop(f"buffer_load_dword v{13+8*k}, v27, s[28:31], s25 offen offset:{1024*k+256}", "st")
        a.vmop(f"buffer_load_dword v{14+8*k}, v3, s[28:31], s25 offen offset:{1024*k+512}", "st")
        a.vmop(f"buffer_load_dword v{18+8*k}, v3, s[28:31], s25 offen offset:{1024*k+576}", "st")
    for k in range(2):
        a.vmop(f"buffer_load_dwordx2 {vr(28+2*k,2)}, v2, s[28:31], s22 offen offset:{1024*k}", "hc")
    S = 32
    a("s_mov_b32 s36, 0xffff0000")
    for X in range(8):
        a.wait(vm=[("p", X)])
        for e in range(4):
            src = P + 4*X + e
            if X == 0:
                a(f"v_lshlrev_b32 v{S+2*e}, 16, v{src}\nv_and_b32 v{S+2*e+1}, s36, v{src}")
            else:
                a(f"v_lshlrev_b32 v5, 16, v{src}\nv_and_b32 v6, s36, v{src}\nv_add_f32 v{S+2*e}, v{S+2*e}, v5\nv_add_f32 v{S+2*e+1}, v{S+2*e+1}, v6")
    a.wait(vm=["st"])
    a("s_mov_b32 s37, 0x3ae38e39\nv_mov_b32 v7, 0x3727c5ac")
    for k in range(2):
        b = 12 + 8*k
        a(f"v_add_f32 v{b}, v{b}, v{b+1}\nv_mov_b32 v{b+1}, v{b}\nv_permlane16_swap_b32 v{b+1}, v{b}\nv_add_f32 v{b}, v{b}, v{b+1}")
        a(f"v_mov_b32 v{b+1}, v{b}\nv_permlane32_swap_b32 v{b+1}, v{b}\nv_add_f32 v{b}, v{b}, v{b+1}\nv_add_f32 v{b}, v{b}, v{b+2}")
        a(f"v_fma_f32 v{b}, v{b}, s37, v7\nv_rcp_f32 v{b}, v{b}")
    a.wait(vm=["hc"])
    for k in range(2):
        b = 12 + 8*k
        for e in range(2):
            src = 28 + 2*k + e; d = S + 4*k + 2*e
            a(f"v_lshlrev_b32 v5, 16, v{src}\nv_and_b32 v6, s36, v{src}\nv_add_f32 v5, v5, v{b+6}\nv_add_f32 v6, v6, v{b+6}")
            a(f"v_fma_f32 v5, v{d}, v{b}, v5\nv_fma_f32 v6, v{d+1}, v{b}, v6\nv_cvt_pk_bf16_f32 v{src}, v5, v6")
        a.vmop(f"buffer_store_dwordx2 {vr(28+2*k,2)}, v4, s[16:19], s{26+k} offen", "o")
    if prof:
        stamp(a, 1, 40); stamp(a, 2, 40); a("s_waitcnt vmcnt(0)"); stamp(a, 3, 40)
        stamp_out(a, kidx, 40, 28, 12, name + "_end")
    a.label(name + "_end"); a("s_endpgm")
    return a.text(), kernel_desc(name, 72), f"kernel={name} grid=(256,1,1) block=(576,1,1) lds=0"

def assemble_file(parts, header=""):
    s = header
    for t, d, l in parts: s += f"; @launch {l}\n"
    s += '.amdgcn_target "amdgcn-amd-amdhsa--gfx950"\n.text\n'
    seen = set()
    for t, d, l in parts:
        if d in seen: continue
        seen.add(d)
        t2, n = fix_hazards(t)
        s += t2 + "\n"
    s += '.section .rodata,"a"\n'
    seen = set()
    for t, d, l in parts:
        if d in seen: continue
        seen.add(d)
        s += ".p2align 6\n" + d + "\n"
    return s
if __name__ == "__main__":
    for g in (gen_p1, gen_p2, gen_k4):
        t, n = fix_hazards(g()[0], True); print(g.__name__, "pad", n, "lines", t.count("\n"))
    open("k3_tmp.s", "w").write(assemble_file([gen_p1(prof=True), gen_p2(prof=True), gen_k4(prof=True)]))
```

```python
from asmlib import *
from layout import *
from k3 import stamp, stamp0, stamp_out, assemble_file
R = 6; SLOT = 16384
LDS_C = R * SLOT
LDS_Q = LDS_C + 36864
LDS_SIZE = LDS_Q + 20480
V_L16 = 1; V_L8 = 2; V_DW = 3; V_DC = 7; V_DD = 8; V_DQ = 12; V_LB = 13; V_LN = 21; V_FA = 22; V_FV = 23; V_ONE = 24; V_F0 = 25; V_PF = 26; V_PD = 27
FR = 28; ACC = 52; CU = 196; XV = 212; VT = 244; VST = 250
S_W = 16; S_D = 20; S_WS = 28
def slot_of(U): return {24: 6, 25: 7, 26: 0}.get(U, U % R)
def free_bar(U): return {24: 18.5, 25: 18.5, 26: 19}.get(U, U - R + 1)
def xreg(i, n=4, o=0):
    return vr(4*i + o, n, "a") if i < 64 else vr(XV + 4*(i-64) + o, n)

class Op:
    def __init__(self, a, s, vm=False, tag=None, then=None, gap=None, fn=None, sgap=0):
        self.sgap = sgap
        if gap is None: gap = a.vgap
        self.a = a; self.s = s; self.isvm = vm; self.tag = tag; self.then = then; self.gap = gap; self.fn = fn
    def __call__(self):
        if self.fn: self.fn()
        elif self.isvm:
            if self.tag and self.tag[0] == "W":
                assert free_bar(self.tag[1]) <= self.a.last_bar_unit, f"LDS slot still in use {self.tag} {self.a.last_bar_unit}"
            if self.tag and self.tag[0] == "Hld":
                assert self.a.cur_group >= self.a.free_after[self.tag[1]], "x regs still live"
            self.a.vmop(self.s, self.tag); self.a.log.append((self.a.cur_group, self.tag))
        else: self.a(self.s)
        if self.then: self.then()

class Sched:
    def __init__(self, a, groups):
        self.a = a; self.g = groups; self.bar = {}; self.sv = {}; self.sm = {}; self.qv = []; self.qm = []; self.qs = []; self.stamps = {}
    def reads(self, gi):
        g = self.g[gi]; out = []
        for ks in range(2):
            base, off, d2 = g["rd"][ks]
            assert 0 <= off and off + d2 < 65536
            r = FR + 8 * (gi % 3) + 4 * ks
            out += [f"ds_read_b64_tr_b16 {vr(r,2)}, v{base} offset:{off}", f"ds_read_b64_tr_b16 {vr(r+2,2)}, v{base} offset:{off + d2}"]
        return out
    def run(self):
        a = self.a; G = self.g
        for gi in (0, 1):
            for x in self.reads(gi): a.lgop(x, ("rd", gi))
        hold = 0; shold = 0
        for gi, g in enumerate(G):
            a.cur_group = gi
            for tag in g["must_done"]:
                assert not any(t == tag for t, _ in self.qv + self.qm + self.qs), f"deadline missed {tag} at group {gi}"
            if gi in self.stamps: stamp(a, self.stamps[gi], VST)
            if gi in self.bar:
                a.wait(vm=self.bar[gi] + g["vm"], lg=[("rd", gi)])
                a("s_barrier"); a.last_bar_unit = g["ring"]
            else:
                a.wait(vm=g["vm"], lg=[("rd", gi)])
            rq = self.reads(gi + 2) if gi + 2 < len(G) else []
            self.qv += self.sv.pop(gi, []); self.qm += self.sm.pop(gi, [])
            r0 = FR + 8 * (gi % 3)
            n = 0
            for tk in range(4):
                for ks in range(2):
                    acc = vr(g["acc"] + 4 * tk, 4)
                    c = "0" if (g["first"] and ks == 0) else acc
                    a(f"v_mfma_f32_16x16x32_bf16 {acc}, {vr(r0+4*ks,4)}, {g['b'][ks][tk]}, {c}")
                    slots = 2
                    if n % 2 == 0 and rq:
                        a.lgop(rq.pop(0), ("rd", gi + 2)); slots -= 1
                    if n == 7: slots -= 1
                    hold -= 1; shold -= 1
                    while slots > 0:
                        q = None
                        if self.qs and ((hold <= 0 and shold <= 0) or not self.qs[0][1].isvm): q = self.qs
                        elif self.qm and hold <= 0 and self.qm[0][1].isvm: q = self.qm
                        elif self.qm and not self.qm[0][1].isvm and (hold <= 2 or not self.qv): q = self.qm
                        elif self.qv: q = self.qv
                        if q is None: break
                        t, op = q.pop(0); op(); slots -= 1
                        if op.isvm: hold = op.gap
                        if op.isvm and q is self.qs: shold = op.sgap
                    n += 1
        for gi in sorted(self.sv): self.qv += self.sv[gi]
        assert not self.sm
        while self.qv or self.qm or self.qs:
            (self.qs or self.qv or self.qm).pop(0)[1]()

def gen(name="ffn_kernel", prof=0, LA=2, staux="sc1", kidx=2, deep=4, sync=True, vgap=4, sgA=24, sgB=12, pfA=True, tim=(17, 8, 15, 12, 22), hgap=5, ilv=True):
    a = Asm(); a.last_bar_unit = 0; a.cur_group = -1; a.log = []; gen.a = a; a.vgap = vgap
    a(kernel_head(name))
    if prof: stamp0(a)
    a(f"s_cmp_ge_u32 s2, 256\ns_cbranch_scc1 {name}_end")
    a("s_load_dwordx4 s[4:7], s[0:1], 40\ns_load_dwordx2 s[8:9], s[0:1], 56\ns_load_dwordx2 s[10:11], s[0:1], 80")
    T = VT
    a(f"v_lshrrev_b32 v{T}, 6, v0\nv_and_b32 v{T+1}, 63, v0\nv_readfirstlane_b32 s12, v{T}")
    a(f"v_lshlrev_b32 v{V_L16}, 4, v{T+1}")
    a(f"v_lshrrev_b32 v{T+2}, 3, v{T+1}\nv_and_b32 v{T+3}, 7, v{T+1}\nv_and_b32 v{T+4}, 6, v{T+2}\nv_xor_b32 v{T+3}, v{T+3}, v{T+4}\nv_lshlrev_b32 v{T+3}, 4, v{T+3}")
    a(f"v_mul_u32_u24 v{V_DW}, 9216, v{T+2}\nv_add_u32 v{V_DW}, v{V_DW}, v{T+3}")
    for i in range(1, 4): a(f"v_add_u32 v{V_DW+i}, {i*(8*9216-1024)}, v{V_DW}")
    a("s_and_b32 s13, s2, 7\ns_bfe_u32 s14, s2, 0x20003\ns_lshr_b32 s15, s2, 5")
    a("s_lshl_b32 s15, s15, 2\ns_add_u32 s15, s15, s12")
    a("s_and_b32 s32, s12, 1\ns_lshr_b32 s33, s12, 1\ns_lshl_b32 s34, s12, 12")
    a(f"s_mul_i32 s41, s13, 1152\ns_mul_i32 s37, s32, {32*9216}\ns_add_u32 s41, s41, s37\ns_lshl_b32 s37, s14, 7\ns_add_u32 s40, s41, s37")
    a(f"s_mul_i32 s42, s15, 73728\ns_add_u32 s42, s42, {WS_HC}")
    a("s_waitcnt lgkmcnt(0)")
    a("s_cmp_eq_u32 s33, 0\ns_cselect_b32 s4, s4, s6\ns_cselect_b32 s5, s5, s7")
    srd(a, S_W, 4, 576*9216); srd(a, S_WS, 10, WS_SIZE)
    KS = 32 * 1152
    def late_setup():
        srd(a, S_D, 8, 4608*1152)
        a(f"v_mul_u32_u24 v{V_DD}, 1152, v{T+2}\nv_add_u32 v{V_DD}, v{V_DD}, v{T+3}")
        for i in range(1, 4): a(f"v_add_u32 v{V_DD+i}, {i*(8*1152-1024)}, v{V_DD}")
        a(f"v_lshlrev_b32 v{V_L8}, 3, v{T+1}")
        a(f"v_lshrrev_b32 v{T+2}, 2, v{T+1}\nv_and_b32 v{T+3}, 3, v{T+1}\nv_lshlrev_b32 v{T+3}, 3, v{T+3}\nv_bfe_u32 v{T+4}, v{T+1}, 3, 2")
        a(f"v_lshl_add_u32 v{V_LN}, v{T+2}, 5, v{T+3}\nv_add_u32 v{V_LN}, {LDS_C}, v{V_LN}")
        a(f"v_lshl_add_u32 v{T+2}, v{T+2}, 7, v{T+3}")
        for t in range(4):
            a(f"v_xor_b32 v{T+3}, {t}, v{T+4}\nv_lshl_add_u32 v{V_LB+t}, v{T+3}, 5, v{T+2}\nv_add_u32 v{V_LB+4+t}, 65536, v{V_LB+t}")
        a(f"v_and_b32 v{V_FA}, 3, v{T+1}\nv_lshlrev_b32 v{V_FA}, 2, v{V_FA}\nv_mov_b32 v{V_ONE}, 1\nv_min_u32 v{V_F0}, 1, v{T+1}\nv_lshlrev_b32 v{V_F0}, 30, v{V_F0}")
        a(f"s_lshl_b32 s56, s13, 2\ns_add_u32 s56, s56, s14\ns_mul_i32 s56, s56, 55296\ns_add_u32 s56, s56, {WS_PK}\ns_lshl_b32 s37, s32, 10\ns_add_u32 s57, s56, s37")
        a("s_mul_i32 s37, s33, 18432\ns_add_u32 s43, s57, s37")
        a("s_lshl_b32 s50, s13, 5\ns_add_u32 s50, s50, s15\ns_mul_i32 s44, s50, 73728")
        a(f"s_mul_i32 s37, s14, 18432\ns_add_u32 s52, s44, s37\ns_add_u32 s52, s52, {WS_PART}\ns_add_u32 s53, s52, 9216")
        a(f"s_add_u32 s44, s44, {WS_H}\ns_lshl_b32 s37, s14, 13\ns_add_u32 s45, s44, s37\ns_lshl_b32 s37, s14, 11\ns_add_u32 s46, s44, s37\ns_add_u32 s46, s46, 65536\ns_mov_b32 s47, s44")
        a(f"s_mul_i32 s49, s13, {576*1152}\ns_mul_i32 s37, s32, {KS}\ns_add_u32 s55, s49, s37\ns_lshl_b32 s37, s14, 8\ns_add_u32 s48, s55, s37\ns_lshl_b32 s37, s33, 7\ns_add_u32 s48, s48, s37")
        for i in range(4):
            a(f"s_add_u32 s37, s14, {i}\ns_and_b32 s37, s37, 3\ns_mul_i32 s38, s37, {2*KS}\ns_add_u32 s{60+i}, s48, s38\ns_lshl_b32 s37, s37, 13\ns_add_u32 s{64+i}, s44, s37")
        a("s_add_u32 s57, s57, 36864")
        for v in range(2):
            a(f"s_add_u32 s37, s14, s33\ns_add_u32 s37, s37, {2*v}\ns_and_b32 s37, s37, 3\ns_lshl_b32 s38, s37, 11\ns_add_u32 s{68+v}, s57, s38")
        a(f"s_add_u32 s70, s57, 16384\ns_add_u32 s48, s48, {16*KS}\ns_add_u32 s47, s44, 65536")
        a(f"v_lshrrev_b32 v{V_PF}, 3, v{T+1}\nv_lshlrev_b32 v{V_PF}, 7, v{V_PF}")
        a(f"s_lshl_b32 s50, s50, 7\ns_add_u32 s50, s50, {WS_FLAG}\ns_lshl_b32 s37, s14, 2\ns_add_u32 s51, s50, s37")
        a(f"s_lshl_b32 s35, s12, 10\ns_add_u32 s35, s35, {LDS_C}")
    groups = []
    def ring_rd(U, img, t4):
        slot = slot_of(U)
        return [(V_LB + 4 * (slot // 4) + t4, (slot % 4) * SLOT + img * 8192 + ks * 4096, 2048) for ks in range(2)]
    B = lambda u: [[xreg((2*u+ks)*4+tk) for tk in range(4)] for ks in range(2)]
    def add(**k):
        k.setdefault("vm", []); k["must_done"] = []; groups.append(k)
    for p in range(2):
        for u in range(9):
            for t in range(8):
                add(ring=9*p+u, need=[("W", 9*p+u)], rd=ring_rd(9*p+u, t & 1, t >> 1), acc=ACC + 16*t, b=B(u), first=(u == 0), vm=[("B", u)] if (p == 0 and t == 0) else [])
    GC = len(groups)
    a.free_after = {}
    for u in range(9):
        for t in range(2):
            add(ring=18, need=[("C", u)], rd=[(V_LN, u*4096 + t*2048 + ks*1024, 512) for ks in range(2)], acc=ACC + 32 + 16*t, b=B(u), first=(u == 0))
        a.free_after[u] = len(groups)
    GE = len(groups)
    A2 = [ACC, ACC+16, ACC+64, ACC+80, ACC+96, ACC+112, ACC+128, CU, ACC+32]
    def p2(u, t):
        if t < 8: return dict(need=[("W", 18+u)], rd=ring_rd(18+u, t >> 2, t & 3))
        return dict(need=[("Q", u // 2)], rd=[(V_LN, 36864 + (2*u+ks)*1024, 512) for ks in range(2)])
    for u in range(5):
        for t in range(9):
            add(ring=18+u if u else 18.5, acc=A2[t], b=B(u), first=(u == 0), vm=[("Hld", u)] if (t == 0 and u % 4) else [], **p2(u, t))
    GL = len(groups)
    for t in range(9):
        for u in range(5, 9):
            add(ring=23, acc=A2[t], b=B(u), first=False, vm=[("Hld", u)] if t == 0 else [], **p2(u, t))
    sch = Sched(a, groups)
    def w_ops(U):
        ops = [Op(a, f"s_add_u32 m0, s34, {slot_of(U) * SLOT}")]
        v, sr, so = (V_DW, S_W, 40) if U < 18 else (V_DD, S_D, 60 + (U - 18) % 4 if U < 26 else 48)
        for i in range(4):
            ops.append(Op(a, f"buffer_load_dwordx4 v{v+i}, s[{sr}:{sr+3}], s{so} offen offset:{1024*i} lds", vm=True, tag=("W", U)))
        if U == 8: ops.append(Op(a, f"s_sub_u32 s40, s40, {8*64*9216 - 512}"))
        elif U < 17: ops.append(Op(a, f"s_add_u32 s40, s40, {64*9216}"))
        elif 18 <= U < 22: ops.append(Op(a, f"s_add_u32 s{so}, s{so}, {8*KS}"))
        return ops
    def c_ops(u):
        return [Op(a, f"s_add_u32 m0, s35, {u*4096}"), Op(a, f"buffer_load_dwordx4 v{V_L16}, s[{S_WS}:{S_WS+3}], s43 offen lds", vm=True, tag=("C", u)), Op(a, f"s_add_u32 s43, s43, 2048")]
    def q_ops(v):
        so = 68 + v % 2 if v < 4 else 70
        return [Op(a, f"s_add_u32 m0, s35, {36864 + v*4096}"), Op(a, f"buffer_load_dwordx4 v{V_L16}, s[{S_WS}:{S_WS+3}], s{so} offen lds", vm=True, tag=("Q", v))] + \
               ([Op(a, f"s_add_u32 s{so}, s{so}, 8192")] if v < 2 else [])
    def b_ops(u, so, tag, aux="", last=4096, gap=None):
        ops = []
        for ks in range(2):
            for tk in range(4):
                ops.append(Op(a, f"buffer_load_dwordx4 {xreg((2*u+ks)*4+tk)}, v{V_L16}, s[{S_WS}:{S_WS+3}], s{so} offen offset:{1024*tk} {aux}", vm=True, tag=(tag, u), gap=gap))
            ops.append(Op(a, f"s_add_u32 s{so}, s{so}, {last if ks else 4096}"))
        return ops
    def hc_ops():
        ops = []
        for ks in range(2):
            for hf in range(2):
                for tk in range(4):
                    ops.append(Op(a, f"buffer_load_dwordx2 {xreg((16+ks)*4+tk, 2, 2*hf)}, v{V_L8}, s[{S_WS}:{S_WS+3}], s47 offen offset:{2048*hf + 512*tk} sc1", vm=True, tag=("Hld", 8), gap=3))
            ops.append(Op(a, "s_add_u32 s47, s47, 4096"))
        return ops
    slow = []
    def signal(P):
        def w():
            assert a.vm.count(("H", P)) == (8, 8, 4)[P]
            a.wait(vm=[("H", P)])
        return [Op(a, "", fn=w),
                Op(a, f"buffer_store_dword v{V_ONE}, v{V_F0}, s[{S_WS}:{S_WS+3}], s51 offen offset:{16*P} sc1", vm=True, tag=("F", P))]
    def poll_issue(P):
        return [Op(a, f"buffer_load_dword v{V_FV}, v{V_FA}, s[{S_WS}:{S_WS+3}], s50 offen offset:{16*P} sc1", vm=True, tag=("Fl", P))]
    def poll_check(P):
        def br():
            a(f"s_cmp_eq_u64 vcc, exec\ns_cbranch_scc0 {name}_slow{P}"); a.label(f"{name}_back{P}")
        slow.append(P)
        return [Op(a, "", fn=lambda: a.wait(vm=[("Fl", P)])), Op(a, f"v_cmp_eq_u32 vcc, 1, v{V_FV}"), Op(a, "s_nop 0"), Op(a, "", fn=br)]
    def M(gi, ops): sch.sm.setdefault(gi, []).extend((None, o) for o in ops)
    for u in range(LA):
        for op in w_ops(u) + b_ops(u, 42, "B"): op()
    late_setup()
    nextW = LA
    cq = [c_ops(u) for u in range(9)] + [q_ops(v) for v in range(5)]
    for U in range(18):
        if U + LA < 9:
            M(8*U, w_ops(nextW) + b_ops(U + LA, 42, "B")); nextW += 1
        else:
            k = 0
            while nextW <= U + deep and k < (1 if U in (8, 9) else 2):
                M(8*U, w_ops(nextW)); nextW += 1; k += 1
            if U >= 10 and U < 17:
                for _ in range(2): M(8*U, cq.pop(0))
    assert not cq
    hl = lambda u: b_ops(u, 64 + u % 4, "Hld", "sc1", 28672, hgap)
    M(8*12 + 4, signal(0)); M(8*15, poll_issue(0)); M(8*16 + 6, poll_check(0))
    if pfA:
        for i in range(8):
            M(8*12 + 6 + 4*i, [Op(a, f"buffer_load_dword v{V_PD}, v{V_PF}, s[{S_WS}:{S_WS+3}], s64 offen offset:{1024*(i%4)} sc1", vm=True, tag=("PF", 0))] + ([Op(a, "s_add_u32 s64, s64, 4096")] if i == 3 else []))
    M(GC + 4, hl(1)); M(GC + 6, hl(2))
    while nextW <= 22: M(GC + 8, w_ops(nextW)); nextW += 1
    M(GC + tim[0], signal(1))
    M(GE, hl(3) + w_ops(23))
    M(GE + tim[1], poll_issue(1) + w_ops(24) + w_ops(25))
    M(GE + tim[3], signal(2))
    h567 = [o for tri in zip(hl(5), hl(6), hl(7)) for o in tri] if ilv else hl(5) + hl(6) + hl(7)
    M(GE + tim[2], poll_check(1) + h567[:15] + poll_issue(2) + h567[15:] + w_ops(26) + poll_check(2) + hc_ops())
    starts = [8*U - 2 for U in range(1, 18)] + [GC - 2, GE - 2] + [GE + 9*u - 2 for u in range(1, 5)] + [GL - 2]
    allb = [0] + starts
    for i, s in enumerate(allb):
        nxt = allb[i+1] if i + 1 < len(allb) else len(groups)
        lo = 0 if s == 0 else s + 2
        need = []
        for g in groups[lo:min(nxt + 2, len(groups))]:
            for x in g["need"]:
                if x not in need: need.append(x)
        sch.bar[s] = need
    first_need = sch.bar.pop(0)
    def V(gi, tag, ops): sch.sv.setdefault(gi, []).extend((tag, o) for o in ops)
    def push(st, tag=None): return lambda: sch.qs.extend((tag, o) for o in st)
    for p in range(2):
        for pr in range(4):
            G = ACC + 32*pr; Uu = G + 16; ops = []
            dst = ((ACC+128, CU)[pr >> 1] if p == 0 else ACC + 64*(pr >> 1)) + 2*(pr & 1)
            for tk in range(4):
                for r in range(4): ops.append(Op(a, f"v_mul_f32 v{G+4*tk+r}, v{G+4*tk+r}, v{Uu+4*tk+r}"))
                h = dst + 4*tk
                ops.append(Op(a, f"v_cvt_pk_bf16_f32 v{h}, v{G+4*tk}, v{G+4*tk+1}"))
                st = None
                if pr & 1:
                    st = [Op(a, f"buffer_store_dwordx4 {vr(h-2,4)}, v{V_L16}, s[{S_WS}:{S_WS+3}], s45 offen offset:{1024*tk} {staux}", vm=True, tag=("H", p), sgap=(sgA, sgB)[p])]
                    if tk == 3: st.append(Op(a, f"s_add_u32 s45, s45, {4096 if pr == 1 else 28672}"))
                ops.append(Op(a, f"v_cvt_pk_bf16_f32 v{h+1}, v{G+4*tk+2}, v{G+4*tk+3}", then=push(st, ("st", p)) if st else None))
            V(72*p + 64 + 2*pr + 2, ("ep", p, pr), ops)
            if p == 0: groups[72 + 2*pr]["must_done"].append(("ep", p, pr))
            elif pr < 2: groups[GC]["must_done"].append(("ep", p, pr))
    groups[GE]["must_done"] += [("st", 1), ("mv", 0), ("mv", 1)]
    groups[GC]["must_done"].append(("st", 0))
    for p in range(2):
        ops = []
        for ks in range(2):
            src = (ACC+128, CU)[ks] if p == 0 else ACC + 64*ks
            for i in range(16): ops.append(Op(a, f"v_accvgpr_write_b32 a{128*p + 16*ks + i}, v{src+i}"))
        V(a.free_after[4*p], ("mv", p), ops)
    G = ACC + 32; Uu = ACC + 48; ops = []
    for tk in range(4):
        for r in range(4): ops.append(Op(a, f"v_mul_f32 v{G+4*tk+r}, v{G+4*tk+r}, v{Uu+4*tk+r}"))
        ops.append(Op(a, f"v_cvt_pk_bf16_f32 v{Uu+4*tk}, v{G+4*tk}, v{G+4*tk+1}"))
        st = [Op(a, f"buffer_store_dwordx2 {vr(Uu+4*tk,2)}, v{V_L8}, s[{S_WS}:{S_WS+3}], s46 offen offset:{512*tk} {staux}", vm=True, tag=("H", 2), gap=3, sgap=6)]
        ops.append(Op(a, f"v_cvt_pk_bf16_f32 v{Uu+4*tk+1}, v{G+4*tk+2}, v{G+4*tk+3}", then=push(st)))
    V(GE, ("ep", 2), ops); groups[GE + 8]["must_done"].append(("ep", 2))
    for t in range(9):
        A = A2[t]; ops = []
        for tp in range(2):
            b = A + 8*tp
            for e in range(4):
                st = None
                if e == 3:
                    st = [Op(a, f"buffer_store_dwordx4 {vr(b,4)}, v{V_L16}, s[{S_WS}:{S_WS+3}], s{52+tp} offen offset:{1024*(t%4)} {staux}", vm=True, tag=("P", t), sgap=12 if t < 8 else 0)]
                    if t % 4 == 3: st.append(Op(a, f"s_add_u32 s{52+tp}, s{52+tp}, 4096"))
                ops.append(Op(a, f"v_cvt_pk_bf16_f32 v{b+e}, v{b+2*e}, v{b+2*e+1}", then=push(st) if st else None))
        V(GL + 4*t + 4, ("ep", 3, t), ops)
    a.wait(vm=first_need)
    a("s_barrier")
    if prof: stamp(a, 1, VST)
    if prof > 1: sch.stamps = {g: 4 + i for i, g in enumerate([24, 48, 72, 96, 120, GC, GE, GE + 18, GL, GL + 16])}
    sch.run()
    if prof:
        stamp(a, 2, VST); a("s_waitcnt vmcnt(0)"); stamp(a, 3, VST)
        stamp_out(a, kidx, VST, S_WS, 12, name + "_end")
    a.label(name + "_end"); a("s_endpgm")
    for P in slow:
        a.label(f"{name}_slow{P}")
        a("s_mov_b32 s54, 0x40000")
        a.label(f"{name}_spin{P}")
        a(f"buffer_load_dword v{V_FV}, v{V_FA}, s[{S_WS}:{S_WS+3}], s50 offen offset:{16*P} sc1\ns_waitcnt vmcnt(0)")
        a(f"v_cmp_eq_u32 vcc, 1, v{V_FV}\ns_sub_u32 s54, s54, 1\ns_cmp_eq_u64 vcc, exec\ns_cbranch_scc1 {name}_back{P}")
        a(f"s_cmp_lg_u32 s54, 0\ns_cbranch_scc1 {name}_spin{P}\ns_branch {name}_back{P}")
    return a.text(), kernel_desc(name, 512, accum=256), f"kernel={name} grid=(256,1,1) block=(256,1,1) lds={LDS_SIZE}"
if __name__ == "__main__":
    t, n = fix_hazards(gen()[0], True); print("pad", n, "lines", t.count("\n"))
    open("k3_tmp.s", "w").write(assemble_file([gen(prof=2)]))
    import itertools
    for tag, it in itertools.groupby(gen.a.log, key=lambda x: x[1]):
        it = list(it); print(tag, it[0][0], it[-1][0], len(it), end=" ; ")
    print()
```

```python
MB = 1 << 20
WS_HC = 0
WS_STATS = 4 * MB
WS_OF = 5 * MB
WS_KVP = 8 * MB
WS_MEANX = 12 * MB
WS_RM = 12 * MB + 65536
WS_FLAG = 13 * MB
WS_PK = 14 * MB
WS_H = 16 * MB
WS_PART = 40 * MB
WS_STAMP = 200 * MB
WS_SIZE = 268435456
```

```python
import k1, k2, k3, k3f, sys
KN = "sequential_preLN__linear_kernel_hedgehog__glu_gated_bilinear__prompt"
hdr = "".join(l for l in open(f"cdna_kernels/{KN}.s.ref") if l.startswith(";") and "@launch" not in l and "Override launch" not in l and "grid=ceil" not in l)
def build(path, parts): open(path, "w").write(k3.assemble_file(parts, hdr))
if __name__ == "__main__":
    build(f"cdna_kernels/{KN}.s", [k1.gen(), k2.gen(), k3f.gen(hgap=6), k3.gen_k4()])
```
